```python
import torch

def _softmax(x, axis=-1):
    return torch.softmax(x, dim=axis)
def _gelu(x):
    return torch.nn.functional.gelu(x, approximate="tanh")
def _silu(x):
    return torch.nn.functional.silu(x)
def _sigmoid(x):
    return torch.sigmoid(x)
def _layernorm(x, axis=-1, eps=1e-5):
    m = x.mean(dim=axis, keepdim=True)
    v = x.var(dim=axis, keepdim=True, unbiased=False)
    return (x - m) / torch.sqrt(v + eps)
def _scatter_add(tgt, idx, src, axis=0):
    return tgt.clone().index_add_(axis, idx, src)
def _segment_sum(src, seg, n):
    out = torch.zeros((n,) + src.shape[1:], dtype=src.dtype)
    return out.index_add_(0, seg, src)
def _pad(x, pw):
    flat = tuple(v for pair in reversed(pw) for v in pair)
    return torch.nn.functional.pad(x, flat)

kernel_name = 'interleave_layers__sliding_block__dense_activation_squared_relu__prompt'

def setup_inputs():

    _w = (lambda a: (lambda t: t.to(torch.bfloat16) if t.is_floating_point() else t)(torch.as_tensor(a)))
    def _A_setup():
        B, S, D = 1, 2048, 512
        return {
            "x": _w((lambda *s: torch.randn(*s, dtype=torch.bfloat16) * 0.05)(B, S, D)),
            "wqkv": _w((lambda *s: torch.randn(*s, dtype=torch.bfloat16) * 0.05)(D, 3 * D)),
            "wo": _w((lambda *s: torch.randn(*s, dtype=torch.bfloat16) * 0.05)(D, D)),
        }
    _A_in = _A_setup()

    def _B_setup():
        B, S, D, F = 1, 2048, 512, 1792
        return {
            "x": _w((lambda *s: torch.randn(*s, dtype=torch.bfloat16) * 0.05)(B, S, D)),
            "w1": _w((lambda *s: torch.randn(*s, dtype=torch.bfloat16) * 0.05)(D, F)),
            "b1": _w((lambda *s: torch.randn(*s, dtype=torch.bfloat16) * 0.2)(F)),
            "w2": _w((lambda *s: torch.randn(*s, dtype=torch.bfloat16) * 0.05)(F, D)),
            "b2": _w((lambda *s: torch.randn(*s, dtype=torch.bfloat16) * 0.8)(D)),
        }
    _B_in = _B_setup()

    return {
        "A_x": _A_in["x"],
        "A_wqkv": _A_in["wqkv"],
        "A_wo": _A_in["wo"],
        "B_x": _B_in["x"],
        "B_w1": _B_in["w1"],
        "B_b1": _B_in["b1"],
        "B_w2": _B_in["w2"],
        "B_b2": _B_in["b2"],
    }

def reference(A_x, A_wqkv, A_wo, B_x, B_w1, B_b1, B_w2, B_b2):
    def _A_ref(x, wqkv, wo):
        B, S, D = x.shape
        H = 32; Dh = D // H; W = 256
        qkv = (lambda x, *d: x.permute(*d))((x @ wqkv).reshape(B, S, 3, H, Dh), 2, 0, 3, 1, 4)
        q, k, v = qkv[0], qkv[1], qkv[2]
        scores = torch.einsum("bhqd,bhkd->bhqk", q, k) * (Dh ** -0.5)
        idx = torch.arange(S)
        mask = (idx[:, None] - idx[None, :] >= 0) & (idx[:, None] - idx[None, :] < W)
        scores = torch.where(mask[None, None], scores, -1e9)
        p = _softmax(scores, axis=-1)
        o = torch.einsum("bhqk,bhkd->bhqd", p, v)
        return (lambda x, *d: x.permute(*d))(o, 0, 2, 1, 3).reshape(B, S, D) @ wo

    def _B_ref(x, w1, b1, w2, b2):
        h = torch.einsum("bsd,df->bsf", x, w1) + b1
        zero = torch.zeros_like(h)
        r = torch.where(h > zero, h, zero)
        h = r * r
        out = torch.einsum("bsf,fd->bsd", h, w2) + b2
        return out

    x = A_x
    x = x + _A_ref(_layernorm(x, axis=-1), A_wqkv, A_wo)
    x = x + _B_ref(_layernorm(x, axis=-1), B_w1, B_b1, B_w2, B_b2)
    x = x + _A_ref(_layernorm(x, axis=-1), A_wqkv, A_wo)
    x = x + _B_ref(_layernorm(x, axis=-1), B_w1, B_b1, B_w2, B_b2)
    return x
```

```python
import re

TRANS = ("v_exp_f32", "v_log_f32", "v_rcp_f32", "v_rsq_f32", "v_sqrt_f32", "v_sin_f32", "v_cos_f32", "v_rcp_iflag_f32")

def _regs(tok):
    tok = tok.strip()
    tok = tok.lstrip("-")
    if tok.startswith("|") and tok.endswith("|"):
        tok = tok[1:-1]
    if tok.startswith("abs(") and tok.endswith(")"):
        tok = tok[4:-1]
    m = re.fullmatch(r"([vsa])(\d+)", tok)
    if m:
        return [(m.group(1), int(m.group(2)))]
    m = re.fullmatch(r"([vsa])\[(\d+):(\d+)\]", tok)
    if m:
        return [(m.group(1), i) for i in range(int(m.group(2)), int(m.group(3)) + 1)]
    if tok in ("vcc", "vcc_lo", "vcc_hi"):
        return [("vcc", 0)]
    if tok in ("exec", "exec_lo", "exec_hi"):
        return [("exec", 0)]
    if tok == "m0":
        return [("m0", 0)]
    return []

class Ins:
    __slots__ = ("text", "op", "ops", "wr", "rd", "kind", "passes", "isdpp", "srcC", "states", "data")
    def __init__(self, text):
        self.text = text
        t = text.split(";")[0].strip()
        parts = t.split(None, 1)
        self.op = parts[0]
        rest = parts[1] if len(parts) > 1 else ""
        ops, cur, depth = [], "", 0
        for ch in rest:
            if ch in "[(":
                depth += 1
            if ch in "])":
                depth -= 1
            if ch == "," and depth == 0:
                ops.append(cur.strip()); cur = ""
            else:
                cur += ch
        if cur.strip():
            ops.append(cur.strip())
        mods = ""
        if ops:
            sp = ops[-1].split(None, 1)
            if len(sp) > 1:
                ops[-1] = sp[0]; mods = sp[1]
        self.ops = ops
        op = self.op
        self.wr, self.rd = [], []
        self.passes = 0
        self.srcC = []
        self.data = []
        self.isdpp = ("row_" in mods) or ("quad_perm" in mods) or op.endswith("_dpp")
        self.states = 1
        if op == "s_nop":
            self.kind = "nop"; self.states = int(ops[0], 0) + 1
        elif op.startswith("v_mfma"):
            self.kind = "mfma"
            self.passes = 8 if "32x32x16" in op else 4
            self.wr = _regs(ops[0])
            self.rd = _regs(ops[1]) + _regs(ops[2]) + _regs(ops[3])
            self.srcC = _regs(ops[3])
        elif op.startswith("v_cmp"):
            self.kind = "valu"
            self.wr = _regs(ops[0])
            for o in ops[1:]:
                self.rd += _regs(o)
        elif op.startswith("v_readfirstlane") or op.startswith("v_readlane"):
            self.kind = "valu"
            self.wr = _regs(ops[0])
            for o in ops[1:]:
                self.rd += _regs(o)
        elif op.startswith("v_permlane"):
            self.kind = "valu"
            self.wr = _regs(ops[0]) + _regs(ops[1]); self.rd = list(self.wr)
        elif op.startswith("v_"):
            self.kind = "valu"
            self.wr = _regs(ops[0])
            start = 1
            if op.startswith(("v_add_co", "v_sub_co", "v_addc_co", "v_subb_co", "v_div_scale", "v_mad_u64")):
                self.wr += _regs(ops[1]); start = 2
            for o in ops[start:]:
                self.rd += _regs(o)
            if op.startswith(("v_fmac", "v_dot2c", "v_mac")):
                self.rd += _regs(ops[0])
            if op.startswith("v_cndmask") and len(ops) == 3:
                self.rd += [("vcc", 0)]
        elif op.startswith("ds_read") or op.startswith("ds_bpermute") or op.startswith("ds_swizzle"):
            self.kind = "ds"
            self.wr = _regs(ops[0])
            for o in ops[1:]:
                self.rd += _regs(o)
        elif op.startswith("ds_"):
            self.kind = "ds"
            for o in ops:
                self.rd += _regs(o)
        elif op.startswith(("buffer_load", "global_load")):
            self.kind = "vmem"
            if " lds" in (" " + mods) or "_lds_" in op:
                for o in ops:
                    self.rd += _regs(o)
                self.rd += [("m0", 0)]
                self.kind = "vmem_lds"
            else:
                self.wr = _regs(ops[0])
                for o in ops[1:]:
                    self.rd += _regs(o)
        elif op.startswith(("buffer_store", "global_store", "buffer_atomic", "global_atomic")):
            self.kind = "vmem"
            for o in ops:
                self.rd += _regs(o)
            if "x4" in op or "x3" in op:
                self.data = _regs(ops[0]) if op.startswith("buffer") else _regs(ops[1])
        elif op.startswith("s_"):
            self.kind = "salu"
            if op.startswith(("s_cmp", "s_cbranch", "s_branch", "s_waitcnt", "s_barrier", "s_endpgm", "s_setprio", "s_sleep", "s_setpc", "s_bitcmp")):
                for o in ops:
                    self.rd += _regs(o)
            else:
                if ops:
                    self.wr = _regs(ops[0])
                for o in ops[1:]:
                    self.rd += _regs(o)
                if "saveexec" in op:
                    self.wr += [("exec", 0)]
        else:
            raise ValueError("unknown instruction: " + text)

def need(prev, cur):
    n = 0
    pw = set(prev.wr);
    cr = set(cur.rd); cw = set(cur.wr)
    vw = {r for r in pw if r[0] in "va" and len(r[0]) == 1}
    sw = {r for r in pw if r[0] in ("s", "vcc")}
    if prev.kind == "valu":
        if cur.kind == "mfma" and (vw & cr):
            n = max(n, 2)
        if cur.kind == "valu":
            if (vw & cr):
                if cur.op.startswith(("v_readfirstlane", "v_readlane")):
                    n = max(n, 1)
                if cur.op.startswith("v_permlane"):
                    n = max(n, 2)
                if cur.isdpp:
                    n = max(n, 2)
                if prev.op.startswith(TRANS) and not cur.op.startswith(TRANS):
                    n = max(n, 1)
            if (sw & cr):
                n = max(n, 2)
                if cur.op.startswith(("v_readlane", "v_writelane")):
                    n = max(n, 4)
        if cur.kind in ("vmem", "vmem_lds") and ({r for r in sw if r[0] == "s"} & cr):
            n = max(n, 5)
        if cur.kind == "mfma" and ("exec", 0) in pw:
            n = max(n, 4)
        if prev.op.startswith(TRANS) and (vw & cr) and cur.kind in ("ds", "vmem", "mfma"):
            n = max(n, 2)
    if prev.kind == "mfma":
        full = {4: 8, 8: 12}[prev.passes]
        if cur.kind == "mfma":
            a_b = set(_r for _r in cur.rd) - set(cur.srcC)
            if pw & a_b:
                n = max(n, full)
            cset = set(cur.srcC)
            if pw & cset:
                if cset == pw and cur.passes == prev.passes:
                    pass
                else:
                    n = max(n, {4: 6, 8: 10}[prev.passes])
            if (pw & cw) and not (cset == pw):
                n = max(n, full)
        elif cur.kind in ("valu", "ds", "vmem", "vmem_lds"):
            if (pw & cr) or (pw & cw):
                n = max(n, full)
        if cur.kind == "valu" and (set(prev.srcC) & cw):
            n = max(n, {4: 3, 8: 7}[prev.passes])
    if prev.kind == "salu" and ("m0", 0) in pw and cur.kind == "vmem_lds":
        n = max(n, 1)
    if prev.kind == "vmem" and prev.data and cur.kind == "valu" and (set(prev.data) & cw):
        n = max(n, 2)
    if prev.kind == "vmem" and prev.data and cur.kind in ("ds", "vmem") and (set(prev.data) & cw):
        n = max(n, 1)
    return n

class Emit:
    def __init__(self):
        self.out = []
        self.win = []
        self.nlab = 0
        self.nins = 0
        self.nops_added = 0
    def label(self, base="L"):
        self.nlab += 1
        return f"{base}_{self.nlab}"
    def raw(self, s):
        self.out.append(s)
    def reset(self):
        self.win = []
    def __call__(self, s):
        for line in s.split("\n"):
            t = line.split(";")[0].strip()
            if not t:
                if line.strip():
                    self.out.append(line)
                continue
            if t.endswith(":"):
                self.out.append(t)
                continue
            if t.startswith("."):
                self.out.append(line)
                continue
            ins = Ins(line)
            dist = 0
            req = 0
            for p in reversed(self.win):
                r = need(p, ins) - dist
                if r > req:
                    req = r
                dist += p.states
                if dist >= 24:
                    break
            while req > 0:
                k = min(req, 16)
                nop = Ins(f"s_nop {k-1}")
                self.out.append(f"  s_nop {k-1}")
                self.win.append(nop)
                self.nops_added += k
                req -= k
            self.out.append("  " + line.strip())
            self.nins += 1
            self.win.append(ins)
            if len(self.win) > 40:
                self.win = self.win[-40:]
            if ins.op in ("s_branch", "s_endpgm", "s_setpc_b64"):
                self.win = []
    def text(self):
        return "\n".join(self.out) + "\n"
```

```python
import sys
from emit import Emit

KNAME = "interleave_layers__sliding_block__dense_activation_squared_relu__prompt_kernel"

L_WQ = [0, 32768, 65536]
L_KBUF, L_VBUF, L_QBUF = 98304, 122880, 147456
def W1_BASE(kb):
    if kb < 4: return 65536 + 7168 * kb
    if kb < 12: return 98304 + 7168 * (kb - 4)
    return 7168 * (kb - 12)
def W2_SLOT(u):
    if u < 9: return 7 + u
    if u < 32: return u + 7
    if u < 39: return u - 32
    if u < 48: return 7 + (u - 39)
    return 16 + (u - 48)
RED_WO, RED_W2 = 32768, 106496
PERS = 159744
L_CONST = PERS
L_XWQ = PERS + 512
L_XW1 = PERS + 1024
L_MODE = PERS + 2048
LDS_TOTAL = 163840

WS_FLAGS = 0x0
WS_KVF = 0x10000
WS_ST = 0x80000
WS_STAMP = 0x200000
WS_XF = 0x400000
WS_X1 = 0x600000
WS_OF = 0xA00000
WS_KV = 0xE00000
WS_HF = 0x1600000
HF_L = 0x700000
FL1, FL2, FL3, FL4 = 0, 1024, 1536, 2048

S_LAY, S_C, S_P, S_W, S_FAST = "s3", "s4", "s5", "s6", "s7"
SRD_X, SRD_WQKV, SRD_WO, SRD_W1, SRD_W2, SRD_WS, SRD_OUT, SRD_T = (
    "s[8:11]", "s[12:15]", "s[16:19]", "s[20:23]", "s[24:27]", "s[28:31]", "s[32:35]", "s[36:39]")
S_B2, S_B1, S_DBG = (40, 41), (42, 43), (44, 45)
S_EPOCH = "s46"
S_FLB = "s47"
MASK0 = 48
T = [f"s{i}" for i in range(80, 100)]
S_ONES = "s100"
S_H = "s101"

POLL_LIMIT = 100000

class Q:
    def __init__(self, maxn):
        self.n = 0; self.tags = {}; self.maxn = maxn
    def issue(self, tag=None):
        self.n += 1
        if tag is not None: self.tags[tag] = self.n
    def cnt(self, tag):
        return min(self.n - self.tags[tag], self.maxn)
    def reset(self):
        self.n = 0; self.tags = {}

def vr(a, n=4):
    return f"v[{a}:{a+n-1}]"

class Gen:
    def __init__(self, stop=None, stamps=False, force_slow=False, nlayers=2):
        self.e = Emit()
        self.stop = stop
        self.stamps = stamps
        self.force_slow = force_slow
        self.nlayers = nlayers
        self.nstamp = 0
    def stamp(self, idx):
        if not self.stamps: return
        e = self.e
        e(f"s_memtime s[98:99]")
        e(f"s_lshl_b32 s97, {S_LAY}, 5")
        e(f"s_add_u32 m0, s97, {idx}")
        e(f"s_waitcnt lgkmcnt(0)")
        e(f"v_writelane_b32 v11, s98, m0")
    def srd(self, dst, lo, hi, size):
        e = self.e
        d = int(dst[2:dst.index(":")])
        e(f"s_mov_b32 s{d}, s{lo}")
        e(f"s_and_b32 s{d+1}, s{hi}, 0xffff")
        e(f"s_mov_b32 s{d+2}, {size}")
        e(f"s_mov_b32 s{d+3}, 0x20000")
    def barrier(self, name=""):
        self.e(f"s_barrier ; {name}")
    def poll(self, s_addr, voff, vtmp, nm):
        e = self.e
        l0, l1 = e.label("POLL"), e.label("POLLOK")
        cnt = T[19]
        e(f"s_mov_b32 {cnt}, 0")
        e(f"{l0}:")
        e(f"buffer_load_dword v{vtmp}, v{voff}, {SRD_WS}, {s_addr} offen sc1")
        e(f"s_add_u32 {cnt}, {cnt}, 1")
        e(f"s_cmp_gt_u32 {cnt}, {POLL_LIMIT}")
        e(f"s_cbranch_scc1 L_BAIL")
        e(f"s_waitcnt vmcnt(0)")
        e(f"v_cmp_gt_u32 vcc, {S_EPOCH}, v{vtmp}")
        e(f"s_cbranch_vccnz {l0}")
        e(f"{l1}:")
    def store_mode(self, text):
        e = self.e
        if isinstance(text, str): text = [text]
        if self.force_slow:
            for t in text: e(t + " sc1")
            return
        ls, ld = e.label("SLOW"), e.label("SDONE")
        e(f"s_cmp_eq_u32 {S_FAST}, 0")
        e(f"s_cbranch_scc1 {ls}")
        for t in text: e(t)
        e(f"s_branch {ld}")
        e(f"{ls}:")
        for t in text: e(t + " sc1")
        e(f"{ld}:")
    def flag_store(self, s_addr, vt, always_sc1=False):
        e = self.e
        e(f"v_mov_b32 v{vt}, {S_EPOCH}")
        e(f"s_mov_b64 exec, 1")
        t = f"buffer_store_dword v{vt}, off, {SRD_WS}, {s_addr}"
        if always_sc1: e(t + " sc1")
        else: self.store_mode(t)
        e(f"s_mov_b64 exec, -1")
    def dma_loop(self, srd, voff, s_soff, soff_stride, s_lds, lds_stride, count, flags=""):
        e = self.e
        if count <= 0: return
        lp = e.label("DMA")
        c = T[18]
        e(f"s_mov_b32 {c}, {count}")
        e(f"{lp}:")
        e(f"s_mov_b32 m0, {s_lds}")
        e(f"s_add_u32 {s_lds}, {s_lds}, {lds_stride}")
        e(f"buffer_load_dwordx4 v{voff}, {srd}, {s_soff} offen {flags} lds")
        e(f"s_add_u32 {s_soff}, {s_soff}, {soff_stride}")
        e(f"s_sub_u32 {c}, {c}, 1")
        e(f"s_cmp_lg_u32 {c}, 0")
        e(f"s_cbranch_scc1 {lp}")
    def check_stop(self, name, lay=None):
        if self.stop is None or self.stop[0] != name: return
        e = self.e
        e(f"s_cmp_eq_u32 {S_LAY}, {self.stop[1]}")
        e(f"s_cbranch_scc1 L_END")

    def prologue(self):
        e = self.e
        e(f"""
        s_cmp_ge_u32 s2, 256
        s_cbranch_scc1 L_END
        s_load_dwordx16 s[64:79], s[0:1], 0
        s_load_dwordx4 s[80:83], s[0:1], 64
        s_load_dwordx2 s[84:85], s[0:1], 80
        v_lshrrev_b32 v1, 6, v0
        v_and_b32 v0, 63, v0
        v_readfirstlane_b32 {S_W}, v1
        s_and_b32 {S_C}, s2, 7
        s_lshl_b32 {S_C}, {S_C}, 1
        s_lshr_b32 {S_P}, s2, 3
        s_lshr_b32 s46, {S_P}, 4
        s_add_u32 {S_C}, {S_C}, s46
        s_and_b32 {S_P}, {S_P}, 15
        s_mov_b32 {S_LAY}, 0
        s_mov_b32 {S_EPOCH}, 1
        s_mov_b32 {S_FAST}, 0
        s_lshl_b32 {S_FLB}, {S_C}, 12
        s_mov_b32 {S_ONES}, 0x3f803f80
        v_lshlrev_b32 v1, 4, v0
        v_and_b32 v10, 15, v0
        v_lshlrev_b32 v10, 2, v10
        v_mov_b32 v11, 0
        s_waitcnt lgkmcnt(0)
        """)
        self.srd(SRD_X, 64, 65, 2048 * 512 * 2)
        self.srd(SRD_WQKV, 66, 67, 512 * 1536 * 2)
        self.srd(SRD_WO, 68, 69, 512 * 512 * 2)
        self.srd(SRD_W1, 72, 73, 512 * 1792 * 2)
        self.srd(SRD_W2, 76, 77, 1792 * 512 * 2)
        self.srd(SRD_WS, 84, 85, 0x10000000)
        self.srd(SRD_OUT, 80, 81, 2048 * 512 * 2)
        e(f"""
        s_mov_b32 s{S_B2[0]}, s78
        s_mov_b32 s{S_B2[1]}, s79
        s_mov_b32 s{S_B1[0]}, s74
        s_mov_b32 s{S_B1[1]}, s75
        s_mov_b32 s{S_DBG[0]}, s82
        s_mov_b32 s{S_DBG[1]}, s83
        """)
        e(f"""
        v_and_b32 v2, 31, v0
        v_lshrrev_b32 v3, 5, v0
        v_lshlrev_b32 v3, 2, v3
        v_sub_u32 v2, v2, v3
        """)
        for r in range(16):
            k = (r & 3) + 8 * (r >> 2)
            e(f"v_cmp_le_i32 s[{MASK0+2*r}:{MASK0+2*r+1}], {k}, v2")
        e(f"s_cmp_ge_u32 {S_W}, 4")
        e(f"s_cbranch_scc1 L_HELPER")

    def stats_finalize(self, vS, vQ, t0, out_pm, out_ps, out_rstd):
        e = self.e
        a, b, c_, d = t0, t0 + 1, t0 + 2, t0 + 3
        e(f"v_mov_b32 v{a}, v{vS}")
        e(f"v_mov_b32 v{b}, v{vQ}")
        e(f"v_permlane32_swap_b32 v{vS}, v{a}")
        e(f"v_permlane32_swap_b32 v{vQ}, v{b}")
        e(f"v_add_f32 v{vS}, v{vS}, v{a}")
        e(f"v_add_f32 v{vQ}, v{vQ}, v{b}")
        e(f"v_mul_f32 v{vS}, 0x3b000000, v{vS}")
        e(f"v_mul_f32 v{vQ}, 0x3b000000, v{vQ}")
        e(f"v_fma_f32 v{vQ}, -v{vS}, v{vS}, v{vQ}")
        e(f"v_max_f32 v{vQ}, 0, v{vQ}")
        e(f"v_cvt_pk_bf16_f32 v{out_pm}, v{vS}, v{vS}")
        e(f"v_cvt_pk_bf16_f32 v{a}, v{vQ}, v{vQ}")
        e(f"v_lshlrev_b32 v{a}, 16, v{a}")
        e(f"v_add_f32 v{a}, 0x3727c5ac, v{a}")
        e(f"v_cvt_pk_bf16_f32 v{a}, v{a}, v{a}")
        e(f"v_lshlrev_b32 v{a}, 16, v{a}")
        e(f"v_sqrt_f32 v{a}, v{a}")
        e(f"v_cvt_pk_bf16_f32 v{out_ps}, v{a}, v{a}")
        e(f"v_lshlrev_b32 v{a}, 16, v{out_ps}")
        e(f"v_rcp_f32 v{out_rstd}, v{a}")

    def sum_partials(self, base, vS, vQ):
        e = self.e
        b = base
        e(f"v_pk_add_f32 v[{b}:{b+1}], v[{b}:{b+1}], v[{b+2}:{b+3}]")
        e(f"v_pk_add_f32 v[{b+4}:{b+5}], v[{b+4}:{b+5}], v[{b+6}:{b+7}]")
        e(f"v_pk_add_f32 v[{b+8}:{b+9}], v[{b+8}:{b+9}], v[{b+10}:{b+11}]")
        e(f"v_pk_add_f32 v[{b+12}:{b+13}], v[{b+12}:{b+13}], v[{b+14}:{b+15}]")
        e(f"v_pk_add_f32 v[{b}:{b+1}], v[{b}:{b+1}], v[{b+4}:{b+5}]")
        e(f"v_pk_add_f32 v[{b+8}:{b+9}], v[{b+8}:{b+9}], v[{b+12}:{b+13}]")
        e(f"v_pk_add_f32 v[{b}:{b+1}], v[{b}:{b+1}], v[{b+8}:{b+9}]")
        assert vS == b and vQ == b + 1

    def compute(self):
        e = self.e
        t0, t1, t2 = T[0], T[1], T[2]
        e(f"""
        s_lshr_b32 {t0}, {S_P}, 3
        s_lshl_b32 {t0}, {t0}, 6
        s_and_b32 {t1}, {S_W}, 1
        s_lshl_b32 {t1}, {t1}, 5
        s_add_u32 {t0}, {t0}, {t1}
        s_lshl_b32 {t1}, {S_C}, 7
        s_add_u32 {t0}, {t0}, {t1}
        s_lshl_b32 {t0}, {t0}, 10
        s_and_b32 {t1}, {S_P}, 7
        s_lshl_b32 {t1}, {t1}, 7            ; 64j*2
        s_add_u32 {t0}, {t0}, {t1}
        s_lshr_b32 {t1}, {S_W}, 1
        s_lshl_b32 {t1}, {t1}, 6            ; 32kh*2
        s_add_u32 {t0}, {t0}, {t1}
        v_and_b32 v12, 31, v0
        v_lshlrev_b32 v12, 10, v12
        v_lshrrev_b32 v13, 5, v0
        v_lshlrev_b32 v13, 3, v13
        v_add_u32 v12, v12, v13
        """)
        for q in range(4):
            e(f"buffer_load_dwordx2 v[{2+2*q}:{3+2*q}], v12, {SRD_X}, {t0} offen offset:{16*q}")
        e("L_CLAYER:")
        self.stamp(0)
        self.qkv_compute()
        self.check_stop("qkv")
        e("L_ATTN:")
        self.attention(helper=False)
        self.check_stop("attn")
        e(f"s_cmp_ge_u32 {S_W}, 4")
        e(f"s_cbranch_scc1 L_H_POSTATTN")
        self.wo_compute()
        self.check_stop("wo")
        self.w1_compute()
        self.check_stop("w1")
        self.w2_compute()
        self.check_stop("w2")
        e(f"s_add_u32 {S_LAY}, {S_LAY}, 1")
        e(f"s_add_u32 {S_EPOCH}, {S_EPOCH}, 1")
        e(f"s_cmp_lt_u32 {S_LAY}, {self.nlayers}")
        e(f"s_cbranch_scc1 L_CLAYER")
        e(f"s_branch L_END")

    def qkv_compute(self):
        e = self.e
        ACT = 128; accK, accV, accQ = 80, 96, 112; RING = 48
        A1, A2, A1Q, A2Q = 12, 13, 14, 15
        t0, t1, t2, t3 = T[0], T[1], T[2], T[3]
        e(f"""
        v_and_b32 v16, 15, v0
        v_lshrrev_b32 v16, 2, v16
        v_lshlrev_b32 v16, 6, v16
        v_lshrrev_b32 v17, 4, v0
        v_and_b32 v17, 1, v17
        v_lshlrev_b32 v17, 5, v17
        v_add_u32 v16, v16, v17
        v_and_b32 v17, 3, v0
        v_lshlrev_b32 v17, 3, v17
        v_add_u32 v16, v16, v17
        v_lshrrev_b32 v17, 5, v0
        s_movk_i32 {t2}, 256
        s_movk_i32 {t3}, 512
        s_cmp_eq_u32 {S_LAY}, 0
        s_cselect_b32 {t0}, {t3}, {t2}
        s_cselect_b32 {t1}, {t2}, {t3}
        v_mul_lo_u32 v17, v17, {t0}
        v_add_u32 v{A1}, v16, v17
        v_add_u32 v{A2}, {t1}, v{A1}
        v_add_u32 v{A1Q}, 0x10000, v{A1}
        v_add_u32 v{A2Q}, 0x10000, v{A2}
        """)
        lx, ld = e.label("QX"), e.label("QLD")
        e(f"s_lshl_b32 {t2}, {S_C}, 2")
        e(f"s_add_u32 {t2}, {t2}, {S_W}          ; tg")
        e(f"s_cmp_eq_u32 {S_LAY}, 0")
        e(f"s_cbranch_scc1 {lx}")
        e(f"s_lshl_b32 {t0}, {S_W}, 7")
        e(f"s_add_u32 {t0}, {t0}, {S_FLB}")
        e(f"s_add_u32 {t0}, {t0}, {WS_FLAGS + FL4}")
        e(f"s_sub_u32 {S_EPOCH}, {S_EPOCH}, 1")
        self.poll(t0, 10, 16, "FL4")
        e(f"s_add_u32 {S_EPOCH}, {S_EPOCH}, 1")
        self.stamp(1)
        e(f"s_lshl_b32 {t0}, {t2}, 12")
        e(f"s_add_u32 {t0}, {t0}, {WS_ST + 0x40000}")
        for u in range(4):
            e(f"buffer_load_dwordx4 {vr(16+4*u)}, v1, {SRD_WS}, {t0} offen offset:{u*1024} sc1")
        e(f"s_lshl_b32 {t0}, {t2}, 15")
        e(f"s_add_u32 {t0}, {t0}, {WS_XF}")
        for s in range(32):
            e(f"buffer_load_dwordx4 {vr(ACT+4*s)}, v1, {SRD_WS}, {t0} offen offset:{(s&3)*1024} sc1")
            if (s & 3) == 3 and s < 31:
                e(f"s_add_u32 {t0}, {t0}, 4096")
        e(f"s_mov_b64 vcc, 0")
        e(f"s_branch {ld}")
        e(f"{lx}:")
        e(f"""
        v_and_b32 v16, 31, v0
        v_lshlrev_b32 v16, 10, v16
        v_lshrrev_b32 v17, 5, v0
        v_lshlrev_b32 v17, 4, v17
        v_add_u32 v20, v16, v17
        s_lshl_b32 {t0}, {t2}, 15
        """)
        for s in range(32):
            e(f"buffer_load_dwordx4 {vr(ACT+4*s)}, v20, {SRD_X}, {t0} offen offset:{32*s}")
        for r in range(16, 20):
            e(f"v_mov_b32 v{r}, 0")
        e(f"s_mov_b64 vcc, -1")
        e(f"{ld}:")
        lg = Q(15)
        def rd_kv(s):
            sl = RING + 8 * (s % 4)
            for t, off in ((0, 0), (1, 32768)):
                e(f"ds_read_b64_tr_b16 v[{sl+4*t}:{sl+4*t+1}], v{A1} offset:{off + s*1024}"); lg.issue()
                e(f"ds_read_b64_tr_b16 v[{sl+4*t+2}:{sl+4*t+3}], v{A2} offset:{off + s*1024}"); lg.issue((s, t))
        self.stamp(24)
        self.barrier("Q0")
        self.stamp(16)
        for s in range(3): rd_kv(s)
        for s in range(32):
            sl = RING + 8 * (s % 4)
            if s + 3 < 32 and (s + 3) % 8 == 0:
                self.stamp(24 + (s+3)//8)
                self.barrier(f"Q{(s+3)//8}")
                self.stamp(16 + (s+3)//8)
            e(f"s_waitcnt vmcnt({31-s}) lgkmcnt({lg.cnt((s,1))})")
            c = "0" if s == 0 else vr(accK, 16)
            e(f"v_mfma_f32_32x32x16_bf16 {vr(accK,16)}, {vr(sl)}, {vr(ACT+4*s)}, {c}")
            if s + 3 < 32: rd_kv(s + 3)
            c = "0" if s == 0 else vr(accV, 16)
            e(f"v_mfma_f32_32x32x16_bf16 {vr(accV,16)}, {vr(sl+4)}, {vr(ACT+4*s)}, {c}")
            sk = e.label("NOD")
            e(f"s_cbranch_vccz {sk}")
            for i in range(4):
                e(f"v_dot2c_f32_bf16 v{16+(i&1)}, {S_ONES}, v{ACT+4*s+i}")
                e(f"v_dot2c_f32_bf16 v{18+(i&1)}, v{ACT+4*s+i}, v{ACT+4*s+i}")
            e(f"{sk}:")
        self.barrier("Q4")
        self.stamp(2)
        lg.reset()
        def rd_q(s):
            sl = RING + 4 * (s % 8)
            e(f"ds_read_b64_tr_b16 v[{sl}:{sl+1}], v{A1Q} offset:{s*1024}"); lg.issue()
            e(f"ds_read_b64_tr_b16 v[{sl+2}:{sl+3}], v{A2Q} offset:{s*1024}"); lg.issue(("q", s))
        XA, XB, EB = 32, 36, 40
        e(f"v_and_b32 v44, 31, v0")
        e(f"v_lshlrev_b32 v44, 2, v44")
        e(f"v_add_u32 v44, {L_XWQ}, v44")
        e(f"ds_read_b32 v{XA}, v44"); lg.issue("xk")
        e(f"ds_read_b32 v{XB}, v44 offset:128"); lg.issue("xv")
        for s in range(5): rd_q(s)
        l0, l1 = e.label("ST0"), e.label("ST1")
        e(f"s_cmp_eq_u32 {S_LAY}, 0")
        e(f"s_cbranch_scc1 {l0}")
        self.sum_partials(16, 16, 17)
        e(f"s_branch {l1}")
        e(f"{l0}:")
        e(f"s_nop 3")
        e(f"v_add_f32 v16, v16, v17")
        e(f"v_add_f32 v17, v18, v19")
        e(f"{l1}:")
        PM, PS, RSTD = 24, 25, 26
        self.stats_finalize(16, 17, 20, PM, PS, RSTD)
        for r in (XA+1, XA+2, XA+3, XB+1, XB+2, XB+3, EB+1, EB+2, EB+3):
            e(f"v_mov_b32 v{r}, 0")
        e(f"v_cmp_gt_u32 vcc, 32, v0")
        e(f"v_cndmask_b32 v{EB}, 0, v{PM}, vcc")
        e(f"s_waitcnt lgkmcnt({lg.cnt('xv')})")
        e(f"v_mfma_f32_32x32x16_bf16 {vr(accK,16)}, {vr(XA)}, {vr(EB)}, {vr(accK,16)}")
        e(f"v_mfma_f32_32x32x16_bf16 {vr(accV,16)}, {vr(XB)}, {vr(EB)}, {vr(accV,16)}")
        e(f"s_lshl_b32 {t0}, {S_W}, 10")
        e(f"s_add_u32 {t0}, {t0}, {L_KBUF + 8*1024}")
        e(f"v_add_u32 v45, {t0}, v1")
        e(f"s_lshl_b32 {t0}, {t2}, 16")
        e(f"s_lshl_b32 {t1}, {S_P}, 12")
        e(f"s_add_u32 {t0}, {t0}, {t1}")
        e(f"s_lshl_b32 {t1}, {S_LAY}, 22")
        e(f"s_add_u32 {t0}, {t0}, {t1}")
        e(f"s_add_u32 {t0}, {t0}, {WS_KV}")
        PK = 16
        PK = 68
        for kv, acc, lbuf in ((0, accK, 0), (1, accV, L_VBUF - L_KBUF)):
            for i in range(8):
                e(f"v_pk_mul_f32 v[{acc+2*i}:{acc+2*i+1}], v[{acc+2*i}:{acc+2*i+1}], v[{RSTD}:{RSTD+1}] op_sel_hi:[1,0]")
            for i in range(8):
                e(f"v_cvt_pk_bf16_f32 v{PK+i}, v{acc+2*i}, v{acc+2*i+1}")
            for hd in range(2):
                e(f"ds_write_b128 v45, {vr(PK+4*hd)} offset:{lbuf + hd*12288}"); lg.issue()
                e(f"buffer_store_dwordx4 {vr(PK+4*hd)}, v1, {SRD_WS}, {t0} offen offset:{hd*2048 + kv*1024} sc1")
        for s in range(5, 7): rd_q(s)
        for s in range(32):
            sl = RING + 4 * (s % 8)
            e(f"s_waitcnt lgkmcnt({lg.cnt(('q', s))})")
            c = "0" if s == 0 else vr(accQ, 16)
            e(f"v_mfma_f32_32x32x16_bf16 {vr(accQ,16)}, {vr(sl)}, {vr(ACT+4*s)}, {c}")
            if s + 7 < 32: rd_q(s + 7)
        self.barrier("Q5")
        self.stamp(3)
        e(f"ds_read_b32 v{XA}, v44 offset:256")
        e(f"s_waitcnt lgkmcnt(0)")
        e(f"v_mfma_f32_32x32x16_bf16 {vr(accQ,16)}, {vr(XA)}, {vr(EB)}, {vr(accQ,16)}")
        e(f"s_lshl_b32 {t0}, {S_C}, 4")
        e(f"s_add_u32 {t0}, {t0}, {S_P}")
        e(f"s_lshl_b32 {t0}, {t0}, 2")
        e(f"s_add_u32 {t0}, {t0}, {S_W}")
        e(f"s_lshl_b32 {t0}, {t0}, 8")
        e(f"s_add_u32 {t0}, {t0}, {WS_KVF}")
        e(f"s_waitcnt vmcnt(0)")
        self.flag_store(t0, 22, always_sc1=True)
        e(f"v_mul_f32 v{RSTD}, 0x3eb8aa3b, v{RSTD}")
        e(f"s_lshl_b32 {t0}, {S_W}, 10")
        e(f"s_add_u32 {t0}, {t0}, {L_QBUF}")
        e(f"v_add_u32 v45, {t0}, v1")
        for i in range(8):
            e(f"v_pk_mul_f32 v[{accQ+2*i}:{accQ+2*i+1}], v[{accQ+2*i}:{accQ+2*i+1}], v[{RSTD}:{RSTD+1}] op_sel_hi:[1,0]")
        for i in range(8):
            e(f"v_cvt_pk_bf16_f32 v{PK+i}, v{accQ+2*i}, v{accQ+2*i+1}")
        for hd in range(2):
            e(f"ds_write_b128 v45, {vr(PK+4*hd)} offset:{hd*4096}")
        e(f"s_waitcnt lgkmcnt(0)")
        self.barrier("B_c")
        self.stamp(4)

    def attention(self, helper):
        e = self.e
        S0 = 64
        KF = 208
        QF = 244
        OA = 32
        PP = 48
        AK, AV, VST, MX, TM = 12, 13, 14, 15, 16
        t0, t1, t2, t3 = T[0], T[1], T[2], T[3]
        NSK = T[4]
        e(f"v_mov_b32 v16, {L_MODE}")
        e(f"ds_read_b32 v17, v16")
        e(f"s_and_b32 {t0}, {S_W}, 3")
        e(f"s_lshr_b32 {t1}, {S_W}, 2")
        e(f"s_mul_i32 {t2}, {t1}, 12288")
        e(f"s_lshl_b32 {t3}, {t0}, 10")
        e(f"s_add_u32 {t2}, {t2}, {t3}               ; hd*12288 + w*1024")
        e(f"s_add_u32 {t3}, {t2}, {L_KBUF}")
        e(f"v_add_u32 v{AK}, {t3}, v1")
        e(f"s_lshl_b32 {t1}, {t1}, 12")
        e(f"s_lshl_b32 {t3}, {t0}, 10")
        e(f"s_add_u32 {t1}, {t1}, {t3}")
        e(f"s_add_u32 {t1}, {t1}, {L_QBUF}")
        e(f"v_add_u32 v18, {t1}, v1")
        e(f"ds_read_b128 {vr(QF)}, v18")
        e(f"s_lshl_b32 {t3}, {S_C}, 2")
        e(f"s_add_u32 {t3}, {t3}, {t0}")
        e(f"s_sub_i32 {NSK}, 8, {t3}")
        e(f"s_max_i32 {NSK}, {NSK}, 0")
        for i in range(9):
            e(f"ds_read_b128 {vr(KF+4*i)}, v{AK} offset:{i*1024}")
        e(f"""
        v_and_b32 v18, 1, v0
        v_lshlrev_b32 v18, 9, v18
        v_lshrrev_b32 v19, 5, v0
        v_lshlrev_b32 v19, 2, v19
        v_and_b32 v20, 15, v0
        v_lshrrev_b32 v20, 2, v20
        v_add_u32 v19, v19, v20
        v_lshlrev_b32 v19, 4, v19
        v_add_u32 v18, v18, v19
        v_lshrrev_b32 v19, 1, v0
        v_and_b32 v19, 1, v19
        v_lshlrev_b32 v19, 3, v19
        v_add_u32 v18, v18, v19
        s_add_u32 {t2}, {t2}, {L_VBUF}
        v_add_u32 v18, {t2}, v18
        v_add_u32 v19, {L_CONST}, v19
        v_and_b32 v20, 16, v0
        v_cmp_eq_u32 vcc, 0, v20
        v_mov_b32 v21, 1024
        v_cndmask_b32 v{AV}, v19, v18, vcc
        v_cndmask_b32 v{VST}, 0, v21, vcc
        """)
        e(f"s_waitcnt lgkmcnt(0)")
        e(f"v_readfirstlane_b32 {S_FAST}, v17")
        for i in range(9):
            if i < 8:
                lk, ld = e.label("SINV"), e.label("SOK")
                e(f"s_cmp_gt_i32 {NSK}, {i}")
                e(f"s_cbranch_scc1 {lk}")
                e(f"v_mfma_f32_32x32x16_bf16 {vr(S0+16*i,16)}, {vr(KF+4*i)}, {vr(QF)}, 0")
                e(f"s_branch {ld}")
                e(f"{lk}:")
                for r in range(16):
                    e(f"v_mov_b32 v{S0+16*i+r}, 0xff800000")
                e(f"{ld}:")
            else:
                e(f"v_mfma_f32_32x32x16_bf16 {vr(S0+16*i,16)}, {vr(KF+4*i)}, {vr(QF)}, 0")
        for r in range(16):
            e(f"v_mov_b32 v{OA+r}, 0")
        e(f"s_nop 7")
        e(f"s_nop 7")
        S8, Sf = S0 + 128, S0
        for r in range(16):
            e(f"v_cndmask_b32 v{S8+r}, v{Sf+r}, v{S8+r}, s[{MASK0+2*r}:{MASK0+2*r+1}]")
        self.stamp(20)
        lg = Q(15)
        e(f"v_add_u32 v{AV}, v{AV}, v{VST}")
        def rd_v(slot, tag):
            b = KF + 8 * slot
            for half in range(2):
                e(f"ds_read_b64_tr_b16 v[{b+4*half}:{b+4*half+1}], v{AV} offset:{half*256}"); lg.issue()
                e(f"ds_read_b64_tr_b16 v[{b+4*half+2}:{b+4*half+3}], v{AV} offset:{half*256+128}"); lg.issue((tag, half))
        rd_v(0, 1)
        e(f"v_add_u32 v{AV}, v{AV}, v{VST}")
        rd_v(1, 2)
        vals = [S0 + 16 * i + r for i in range(1, 9) for r in range(16)]
        ch = [MX, TM, TM + 1, TM + 2]
        for c4 in range(4):
            part = vals[c4 * 32:(c4 + 1) * 32]
            e(f"v_max3_f32 v{ch[c4]}, v{part[0]}, v{part[1]}, v{part[2]}")
        for k in range(3, 31, 2):
            for c4 in range(4):
                part = vals[c4 * 32:(c4 + 1) * 32]
                e(f"v_max3_f32 v{ch[c4]}, v{ch[c4]}, v{part[k]}, v{part[k+1]}")
        for c4 in range(4):
            part = vals[c4 * 32:(c4 + 1) * 32]
            e(f"v_max_f32 v{ch[c4]}, v{ch[c4]}, v{part[31]}")
        e(f"v_max3_f32 v{MX}, v{MX}, v{TM}, v{TM+1}")
        e(f"v_max_f32 v{MX}, v{MX}, v{TM+2}")
        e(f"v_mov_b32 v{TM}, v{MX}")
        e(f"v_permlane32_swap_b32 v{MX}, v{TM}")
        e(f"v_max_f32 v{MX}, v{MX}, v{TM}")
        self.stamp(21)
        order = [1, 2, 3, 4, 5, 6, 7, 8]
        for n, i in enumerate(order):
            Sb = S0 + 16 * i
            for r in range(16):
                e(f"v_sub_f32 v{Sb+r}, v{Sb+r}, v{MX}")
            for r in range(16):
                e(f"v_exp_f32 v{Sb+r}, v{Sb+r}")
            P = PP + 8 * (n & 1)
            if i < 8:
                for r in range(8):
                    e(f"v_cvt_pk_bf16_f32 v{P+r}, v{Sb+2*r}, v{Sb+2*r+1}")
            else:
                for r in range(16):
                    m = f"s[{MASK0+2*r}:{MASK0+2*r+1}]"
                    e(f"v_cndmask_b32 v{Sf+r}, v{Sb+r}, 0, {m}")
                    e(f"v_cndmask_b32 v{Sb+r}, 0, v{Sb+r}, {m}")
                for r in range(8):
                    e(f"v_cvt_pk_bf16_f32 v{P+r}, v{Sb+2*r}, v{Sb+2*r+1}")
            slot = n % 3
            b = KF + 8 * slot
            lk = None
            if i < 8:
                lk = e.label("PVSK")
                e(f"s_waitcnt lgkmcnt({lg.cnt((i,1))})")
                e(f"s_cmp_gt_i32 {NSK}, {i}")
                e(f"s_cbranch_scc1 {lk}")
            else:
                e(f"s_waitcnt lgkmcnt({lg.cnt((i,1))})")
            e(f"v_mfma_f32_32x32x16_bf16 {vr(OA,16)}, {vr(b)}, {vr(P)}, {vr(OA,16)}")
            e(f"v_mfma_f32_32x32x16_bf16 {vr(OA,16)}, {vr(b+4)}, {vr(P+4)}, {vr(OA,16)}")
            if lk: e(f"{lk}:")
            nn = n + 2
            if nn < len(order):
                e(f"v_add_u32 v{AV}, v{AV}, v{VST}")
                rd_v(nn % 3, order[nn])
            elif nn == len(order):
                e(f"v_lshlrev_b32 v{TM}, 3, v{VST}")
                e(f"v_sub_u32 v{AV}, v{AV}, v{TM}")
                rd_v(nn % 3, 0)
        P = PP
        for r in range(8):
            e(f"v_cvt_pk_bf16_f32 v{P+r}, v{Sf+2*r}, v{Sf+2*r+1}")
        b = KF + 8 * (len(order) % 3)
        lk = e.label("PVSK")
        e(f"s_waitcnt lgkmcnt(0)")
        e(f"s_cmp_gt_i32 {NSK}, 0")
        e(f"s_cbranch_scc1 {lk}")
        e(f"v_mfma_f32_32x32x16_bf16 {vr(OA,16)}, {vr(b)}, {vr(P)}, {vr(OA,16)}")
        e(f"v_mfma_f32_32x32x16_bf16 {vr(OA,16)}, {vr(b+4)}, {vr(P+4)}, {vr(OA,16)}")
        e(f"{lk}:")
        e(f"s_nop 7")
        e(f"s_nop 7")
        self.stamp(22)
        e(f"v_rcp_f32 v{TM}, v{OA+8}")
        for i in range(4):
            e(f"v_pk_mul_f32 v[{OA+2*i}:{OA+2*i+1}], v[{OA+2*i}:{OA+2*i+1}], v[{TM}:{TM+1}] op_sel_hi:[1,0]")
        for i in range(4):
            e(f"v_cvt_pk_bf16_f32 v{PP+i}, v{OA+2*i}, v{OA+2*i+1}")
        e(f"s_and_b32 {t0}, {S_W}, 3")
        e(f"s_lshl_b32 {t1}, {S_C}, 2")
        e(f"s_add_u32 {t1}, {t1}, {t0}")
        e(f"s_lshl_b32 {t1}, {t1}, 15")
        e(f"s_lshr_b32 {t2}, {S_W}, 2")
        e(f"s_lshl_b32 {t3}, {S_P}, 1")
        e(f"s_add_u32 {t3}, {t3}, {t2}")
        e(f"s_lshl_b32 {t3}, {t3}, 10")
        e(f"s_add_u32 {t1}, {t1}, {t3}")
        e(f"s_lshl_b32 {t3}, {S_LAY}, 21")
        e(f"s_add_u32 {t1}, {t1}, {t3}")
        e(f"s_add_u32 {t1}, {t1}, {WS_OF}")
        self.store_mode(f"buffer_store_dwordx4 {vr(PP)}, v1, {SRD_WS}, {t1} offen")
        e(f"s_lshl_b32 {t0}, {t0}, 1")
        e(f"s_add_u32 {t0}, {t0}, {t2}")
        e(f"s_lshl_b32 {t0}, {t0}, 7")
        e(f"s_lshl_b32 {t3}, {S_P}, 2")
        e(f"s_add_u32 {t0}, {t0}, {t3}")
        e(f"s_add_u32 {t0}, {t0}, {S_FLB}")
        e(f"s_add_u32 {t0}, {t0}, {WS_FLAGS + FL1}")
        e(f"s_waitcnt vmcnt(0)")
        self.flag_store(t0, TM)
        self.barrier("B_d")
        self.stamp(5)

    def tile64_addr(self, akeep, asend):
        e = self.e
        t0 = T[0]
        e(f"""
        v_lshrrev_b32 v16, 5, v0
        v_lshlrev_b32 v16, 2, v16
        v_and_b32 v17, 15, v0
        v_lshrrev_b32 v17, 2, v17
        v_add_u32 v16, v16, v17
        v_lshlrev_b32 v16, 7, v16
        v_lshrrev_b32 v17, 1, v17
        s_lshr_b32 {t0}, {S_W}, 1
        v_xor_b32 v17, {t0}, v17
        v_and_b32 v17, 1, v17
        v_lshlrev_b32 v17, 6, v17
        v_add_u32 v16, v16, v17
        v_lshrrev_b32 v17, 4, v0
        v_and_b32 v17, 1, v17
        v_lshlrev_b32 v17, 5, v17
        v_add_u32 v16, v16, v17
        v_and_b32 v17, 3, v0
        v_lshlrev_b32 v17, 3, v17
        v_add_u32 v16, v16, v17
        s_lshl_b32 {t0}, {t0}, 11
        v_add_u32 v{akeep}, {t0}, v16
        v_xor_b32 v{asend}, 64, v{akeep}
        """)
    def tg64(self, dst):
        e = self.e
        e(f"s_lshr_b32 {T[7]}, {S_P}, 3")
        e(f"s_lshl_b32 {T[7]}, {T[7]}, 1")
        e(f"s_and_b32 {dst}, {S_W}, 1")
        e(f"s_add_u32 {T[7]}, {T[7]}, {dst}")
        e(f"s_lshl_b32 {dst}, {S_C}, 2")
        e(f"s_add_u32 {dst}, {dst}, {T[7]}")
    def reduce_exchange(self, red, accK, accS, tmp):
        e = self.e
        t0 = T[0]
        return
    def epilogue64(self, accK, RX, red, final_ok):
        e = self.e
        for i in range(8):
            e(f"v_pk_add_f32 v[{accK+2*i}:{accK+2*i+1}], v[{accK+2*i}:{accK+2*i+1}], v[{RX+2*i}:{RX+2*i+1}]")
        for i in range(8):
            e(f"v_lshlrev_b32 v{RX+2*i}, 16, v{2+i}")
            e(f"v_and_b32 v{RX+2*i+1}, 0xffff0000, v{2+i}")
        for i in range(8):
            e(f"v_pk_add_f32 v[{accK+2*i}:{accK+2*i+1}], v[{accK+2*i}:{accK+2*i+1}], v[{RX+2*i}:{RX+2*i+1}]")
        for i in range(8):
            e(f"v_cvt_pk_bf16_f32 v{2+i}, v{accK+2*i}, v{accK+2*i+1}")
        e(f"v_pk_add_f32 v[{RX}:{RX+1}], v[{accK}:{accK+1}], v[{accK+2}:{accK+3}]")
        e(f"v_pk_mul_f32 v[{RX+2}:{RX+3}], v[{accK}:{accK+1}], v[{accK}:{accK+1}]")
        e(f"v_pk_fma_f32 v[{RX+2}:{RX+3}], v[{accK+2}:{accK+3}], v[{accK+2}:{accK+3}], v[{RX+2}:{RX+3}]")
        for i in range(2, 8):
            e(f"v_pk_add_f32 v[{RX}:{RX+1}], v[{RX}:{RX+1}], v[{accK+2*i}:{accK+2*i+1}]")
            e(f"v_pk_fma_f32 v[{RX+2}:{RX+3}], v[{accK+2*i}:{accK+2*i+1}], v[{accK+2*i}:{accK+2*i+1}], v[{RX+2}:{RX+3}]")
        e(f"v_add_f32 v16, v{RX}, v{RX+1}")
        e(f"v_add_f32 v17, v{RX+2}, v{RX+3}")
        e(f"v_mov_b32 v18, v16")
        e(f"v_mov_b32 v19, v17")
        e(f"v_permlane32_swap_b32 v16, v18")
        e(f"v_permlane32_swap_b32 v17, v19")
        e(f"v_add_f32 v16, v16, v18")
        e(f"v_add_f32 v17, v17, v19")
    def stats_store(self, tg, stbuf_sgpr):
        e = self.e
        t0, t1 = T[0], T[1]
        e(f"s_lshl_b32 {t0}, {tg}, 12")
        e(f"s_add_u32 {t0}, {t0}, {stbuf_sgpr}")
        e(f"s_and_b32 {t1}, {S_P}, 7")
        e(f"s_lshl_b32 {t1}, {t1}, 9")
        e(f"s_add_u32 {t0}, {t0}, {t1}")
        e(f"s_lshr_b32 {t1}, {S_W}, 1")
        e(f"s_lshl_b32 {t1}, {t1}, 3")
        e(f"s_add_u32 {t0}, {t0}, {t1}")
        e(f"s_mov_b32 exec_hi, 0")
        self.store_mode(f"buffer_store_dwordx2 v[16:17], v1, {SRD_WS}, {t0} offen")
        e(f"s_mov_b32 exec_hi, -1")
    def flag64(self, fl):
        e = self.e
        t0, t1 = T[0], T[1]
        e(f"s_lshl_b32 {t0}, {T[7]}, 7")
        e(f"s_and_b32 {t1}, {S_P}, 7")
        e(f"s_lshl_b32 {t1}, {t1}, 1")
        e(f"s_add_u32 {t0}, {t0}, {S_FLB}")
        e(f"s_lshl_b32 {t1}, {t1}, 2")
        e(f"s_add_u32 {t0}, {t0}, {t1}")
        e(f"s_lshr_b32 {t1}, {S_W}, 1")
        e(f"s_lshl_b32 {t1}, {t1}, 2")
        e(f"s_add_u32 {t0}, {t0}, {t1}")
        e(f"s_add_u32 {t0}, {t0}, {WS_FLAGS + fl}")
        e(f"s_waitcnt vmcnt(0)")
        self.flag_store(t0, 18)
    def exchange(self, red, accS, RX, bf, bg):
        e = self.e
        t0 = T[0]
        self.barrier(bf)
        e(f"s_and_b32 {t0}, {S_W}, 1")
        e(f"s_lshl_b32 {t0}, {t0}, 1")
        e(f"s_lshr_b32 {T[1]}, {S_W}, 1")
        e(f"s_add_u32 {t0}, {t0}, {T[1]}")
        e(f"s_lshl_b32 {t0}, {t0}, 12")
        e(f"s_add_u32 {t0}, {t0}, {red}")
        e(f"v_add_u32 v20, {t0}, v1")
        e(f"v_xor_b32 v21, 0x1000, v20")
        e(f"s_nop 7")
        e(f"s_nop 3")
        for q in range(4):
            e(f"ds_write_b128 v21, {vr(accS+4*q)} offset:{q*1024}")
        e(f"s_waitcnt lgkmcnt(0)")
        self.barrier(bg)
        for q in range(4):
            e(f"ds_read_b128 {vr(RX+4*q)}, v20 offset:{q*1024}")
        e(f"s_waitcnt lgkmcnt(0)")

    def wo_compute(self):
        e = self.e
        ACT = 128; accK, accS = 80, 96; RING = 48; AKP, ASN = 12, 13; RX = 112
        t0, t1, TG = T[0], T[1], T[6]
        self.tile64_addr(AKP, ASN)
        self.tg64(TG)
        e(f"s_lshl_b32 {t0}, {T[7]}, 1")
        e(f"s_lshr_b32 {t1}, {S_W}, 1")
        e(f"s_add_u32 {t0}, {t0}, {t1}")
        e(f"s_lshl_b32 {t0}, {t0}, 7")
        e(f"s_add_u32 {t0}, {t0}, {S_FLB}")
        e(f"s_add_u32 {t0}, {t0}, {WS_FLAGS + FL1}")
        self.poll(t0, 10, 16, "FL1")
        self.stamp(6)
        e(f"s_lshl_b32 {t0}, {TG}, 15")
        e(f"s_lshl_b32 {t1}, {S_LAY}, 21")
        e(f"s_add_u32 {t0}, {t0}, {t1}")
        e(f"s_lshr_b32 {t1}, {S_W}, 1")
        e(f"s_lshl_b32 {t1}, {t1}, 10")
        e(f"s_add_u32 {t0}, {t0}, {t1}")
        e(f"s_add_u32 {t0}, {t0}, {WS_OF}")
        for u in range(16):
            e(f"buffer_load_dwordx4 {vr(ACT+4*u)}, v1, {SRD_WS}, {t0} offen offset:{(u&1)*2048} sc1")
            if u & 1: e(f"s_add_u32 {t0}, {t0}, 4096")
        lg = Q(15)
        def rd(u):
            sl = RING + 8 * (u % 4)
            for t, a in ((0, AKP), (1, ASN)):
                e(f"ds_read_b64_tr_b16 v[{sl+4*t}:{sl+4*t+1}], v{a} offset:{u*4096}"); lg.issue()
                e(f"ds_read_b64_tr_b16 v[{sl+4*t+2}:{sl+4*t+3}], v{a} offset:{u*4096+1024}"); lg.issue((u, t))
        for u in range(3): rd(u)
        for u in range(16):
            sl = RING + 8 * (u % 4)
            e(f"s_waitcnt vmcnt({15-u}) lgkmcnt({lg.cnt((u,1))})")
            c = "0" if u == 0 else vr(accK, 16)
            e(f"v_mfma_f32_32x32x16_bf16 {vr(accK,16)}, {vr(sl)}, {vr(ACT+4*u)}, {c}")
            if u + 3 < 16: rd(u + 3)
            c = "0" if u == 0 else vr(accS, 16)
            e(f"v_mfma_f32_32x32x16_bf16 {vr(accS,16)}, {vr(sl+4)}, {vr(ACT+4*u)}, {c}")
        self.stamp(7)
        self.exchange(RED_WO, accS, RX, "B_f", "B_g")
        self.epilogue64(accK, RX, RED_WO, False)
        e(f"""
        v_and_b32 v20, 15, v0
        v_lshlrev_b32 v20, 4, v20
        v_lshrrev_b32 v21, 4, v0
        v_and_b32 v21, 1, v21
        v_lshlrev_b32 v21, 14, v21
        v_add_u32 v20, v20, v21
        v_lshrrev_b32 v21, 5, v0
        v_lshlrev_b32 v21, 8, v21
        v_add_u32 v20, v20, v21
        s_lshl_b32 {t0}, {TG}, 15
        s_lshl_b32 {t1}, {S_LAY}, 21
        s_add_u32 {t0}, {t0}, {t1}
        s_and_b32 {t1}, {S_P}, 7
        s_lshl_b32 {t1}, {t1}, 11
        s_add_u32 {t0}, {t0}, {t1}
        s_lshr_b32 {t1}, {S_W}, 1
        s_lshl_b32 {t1}, {t1}, 10
        s_add_u32 {t0}, {t0}, {t1}
        s_add_u32 {t0}, {t0}, {WS_X1}
        """)
        self.store_mode([f"buffer_store_dwordx4 v[2:5], v20, {SRD_WS}, {t0} offen",
                         f"buffer_store_dwordx4 v[6:9], v20, {SRD_WS}, {t0} offen offset:512"])
        e(f"s_lshl_b32 {T[2]}, {S_LAY}, 19")
        e(f"s_add_u32 {T[2]}, {T[2]}, {WS_ST}")
        self.stats_store(TG, T[2])
        self.flag64(FL2)
        self.stamp(8)

    def w1_compute(self):
        e = self.e
        ACT = 128; ACC = 72; RING = 32; NR = 10
        A0, A1, A2 = 12, 13, 14
        t0, t1, TG = T[0], T[1], T[6]
        self.barrier("B_h0")
        e(f"""
        v_lshrrev_b32 v16, 4, v0
        v_and_b32 v17, 1, v16
        v_lshlrev_b32 v17, 2, v17
        v_lshrrev_b32 v16, 1, v16
        v_lshlrev_b32 v16, 4, v16
        v_add_u32 v16, v16, v17
        v_and_b32 v17, 15, v0
        v_lshrrev_b32 v17, 2, v17
        v_add_u32 v16, v16, v17
        v_mul_u32_u24 v16, 224, v16
        v_and_b32 v17, 3, v0
        v_lshlrev_b32 v17, 3, v17
        v_add_u32 v{A0}, v16, v17
        v_add_u32 v{A1}, 0x10000, v{A0}
        v_add_u32 v{A2}, 0x20000, v{A0}
        s_lshl_b32 {TG}, {S_C}, 2
        s_add_u32 {TG}, {TG}, {S_W}
        s_lshl_b32 {t0}, {S_W}, 7
        s_add_u32 {t0}, {t0}, {S_FLB}
        s_add_u32 {t0}, {t0}, {WS_FLAGS + FL2}
        """)
        self.poll(t0, 10, 16, "FL2")
        self.stamp(9)
        e(f"s_lshl_b32 {t0}, {TG}, 12")
        e(f"s_lshl_b32 {t1}, {S_LAY}, 19")
        e(f"s_add_u32 {t0}, {t0}, {t1}")
        e(f"s_add_u32 {t0}, {t0}, {WS_ST}")
        for u in range(4):
            e(f"buffer_load_dwordx4 {vr(16+4*u)}, v1, {SRD_WS}, {t0} offen offset:{u*1024} sc1")
        e(f"s_lshl_b32 {t0}, {TG}, 15")
        e(f"s_lshl_b32 {t1}, {S_LAY}, 21")
        e(f"s_add_u32 {t0}, {t0}, {t1}")
        e(f"s_add_u32 {t0}, {t0}, {WS_X1}")
        e(f"s_add_u32 {t1}, {t0}, 16384")
        for kb in range(16):
            e(f"buffer_load_dwordx4 {vr(ACT+8*kb)}, v1, {SRD_WS}, {t0} offen offset:{(kb&3)*1024} sc1")
            e(f"buffer_load_dwordx4 {vr(ACT+8*kb+4)}, v1, {SRD_WS}, {t1} offen offset:{(kb&3)*1024} sc1")
            if (kb & 3) == 3 and kb < 15:
                e(f"s_add_u32 {t0}, {t0}, 4096")
                e(f"s_add_u32 {t1}, {t1}, 4096")
        self.barrier("B_h")
        lg = Q(15)
        seq = [(kb, nt) for kb in range(16) for nt in range(7)]
        def rd(n):
            kb, nt = seq[n]
            sl = RING + 4 * (n % NR)
            for rdn in range(2):
                addr = W1_BASE(kb) + rdn * 8 * 224 + nt * 32
                if addr >= 131072: a, off = A2, addr - 131072
                elif addr >= 65536: a, off = A1, addr - 65536
                else: a, off = A0, addr
                e(f"ds_read_b64_tr_b16 v[{sl+2*rdn}:{sl+2*rdn+1}], v{a} offset:{off}"); lg.issue((n, rdn))
        PRE = 7
        for n in range(PRE): rd(n)
        for n, (kb, nt) in enumerate(seq):
            sl = RING + 4 * (n % NR)
            if nt == 0:
                e(f"s_waitcnt vmcnt({30-2*kb}) lgkmcnt({lg.cnt((n,1))})")
            else:
                e(f"s_waitcnt lgkmcnt({lg.cnt((n,1))})")
            for tt in range(2):
                acc = ACC + (nt * 2 + tt) * 4
                c = "0" if kb == 0 else vr(acc)
                e(f"v_mfma_f32_16x16x32_bf16 {vr(acc)}, {vr(sl)}, {vr(ACT+8*kb+4*tt)}, {c}")
                if tt == 0 and n + PRE < len(seq): rd(n + PRE)
        self.barrier("B_i")
        self.stamp(10)
        XA = RING
        e(f"v_and_b32 v60, 15, v0")
        e(f"v_lshlrev_b32 v60, 3, v60")
        e(f"v_add_u32 v60, {L_XW1}, v60")
        for nt in range(7):
            e(f"ds_read_b64 v[{XA+4*nt}:{XA+4*nt+1}], v60 offset:{nt*128}")
            e(f"v_mov_b32 v{XA+4*nt+2}, 0")
            e(f"v_mov_b32 v{XA+4*nt+3}, 0")
        self.sum_partials(16, 16, 17)
        PM, PS, RS = 24, 25, 26
        self.stats_finalize(16, 17, 20, PM, PS, RS)
        e(f"v_and_b32 v{PS}, 0xffff, v{PS}")
        E0, E1 = 60, 64
        R0, R1 = 28, 30
        e(f"v_mov_b32 v{E0}, v{PM}")
        e(f"v_mov_b32 v{E1}, v{PM}")
        e(f"v_mov_b32 v{E0+1}, v{PS}")
        e(f"v_mov_b32 v{E1+1}, v{PS}")
        e(f"v_mov_b32 v{R0}, v{RS}")
        e(f"v_mov_b32 v{R1}, v{RS}")
        e(f"v_permlane16_swap_b32 v{E0}, v{E1}")
        e(f"v_permlane16_swap_b32 v{E0+1}, v{E1+1}")
        e(f"v_permlane16_swap_b32 v{R0}, v{R1}")
        e(f"v_cmp_gt_u32 vcc, 16, v0")
        for E in (E0, E1):
            e(f"v_cndmask_b32 v{E}, 0, v{E}, vcc")
            e(f"v_cndmask_b32 v{E+1}, 0, v{E+1}, vcc")
            e(f"v_mov_b32 v{E+2}, 0")
            e(f"v_mov_b32 v{E+3}, 0")
        e(f"s_waitcnt lgkmcnt(0)")
        for nt in range(7):
            for tt, E in ((0, E0), (1, E1)):
                acc = ACC + (nt * 2 + tt) * 4
                e(f"v_mfma_f32_16x16x32_bf16 {vr(acc)}, {vr(XA+4*nt)}, {vr(E)}, {vr(acc)}")
        e(f"""
        v_lshrrev_b32 v20, 4, v0
        v_and_b32 v20, 1, v20
        v_lshlrev_b32 v20, 9, v20
        v_lshrrev_b32 v21, 5, v0
        v_lshlrev_b32 v21, 8, v21
        v_add_u32 v20, v20, v21
        v_and_b32 v21, 15, v0
        v_lshlrev_b32 v21, 4, v21
        v_add_u32 v20, v20, v21
        s_mul_i32 {t0}, {TG}, 114688
        s_mul_i32 {t1}, {S_LAY}, {HF_L}
        s_add_u32 {t0}, {t0}, {t1}
        s_mul_i32 {t1}, {S_P}, 7168
        s_add_u32 {t0}, {t0}, {t1}
        s_add_u32 {t0}, {t0}, {WS_HF}
        """)
        OUT = 128
        stores = []
        for nt in range(7):
            for tt, R in ((0, R0), (1, R1)):
                acc = ACC + (nt * 2 + tt) * 4
                for r in range(4):
                    e(f"v_max_f32 v{acc+r}, 0, v{acc+r}")
                for i in range(2):
                    e(f"v_pk_mul_f32 v[{acc+2*i}:{acc+2*i+1}], v[{acc+2*i}:{acc+2*i+1}], v[{R}:{R+1}] op_sel_hi:[1,0]")
                for i in range(2):
                    e(f"v_pk_mul_f32 v[{acc+2*i}:{acc+2*i+1}], v[{acc+2*i}:{acc+2*i+1}], v[{acc+2*i}:{acc+2*i+1}]")
                for i in range(2):
                    e(f"v_cvt_pk_bf16_f32 v{OUT+4*nt+2*tt+i}, v{acc+2*i}, v{acc+2*i+1}")
            e(f"v_permlane32_swap_b32 v{OUT+4*nt}, v{OUT+4*nt+2}")
            e(f"v_permlane32_swap_b32 v{OUT+4*nt+1}, v{OUT+4*nt+3}")
        e(f"s_add_u32 {t1}, {t0}, 4096")
        st = []
        for nt in range(7):
            base, off = (t0, nt * 1024) if nt < 4 else (t1, (nt - 4) * 1024)
            st.append(f"buffer_store_dwordx4 {vr(OUT+4*nt)}, v20, {SRD_WS}, {base} offen offset:{off}")
        self.store_mode(st)
        e(f"s_lshl_b32 {t0}, {S_W}, 7")
        e(f"s_lshl_b32 {t1}, {S_P}, 2")
        e(f"s_add_u32 {t0}, {t0}, {t1}")
        e(f"s_add_u32 {t0}, {t0}, {S_FLB}")
        e(f"s_add_u32 {t0}, {t0}, {WS_FLAGS + FL3}")
        e(f"s_waitcnt vmcnt(0)")
        self.flag_store(t0, 18)
        self.stamp(11)

    def w2_compute(self):
        e = self.e
        ACT = 128; NA = 32; accK, accS = 80, 96; RING = 48; RX = 112
        AK = [12, 14, 22]; AS = [13, 15, 23]
        t0, t1, TG = T[0], T[1], T[6]
        self.tile64_addr(AK[0], AS[0])
        for i in (1, 2):
            e(f"v_add_u32 v{AK[i]}, {i*0x10000}, v{AK[0]}")
            e(f"v_add_u32 v{AS[i]}, {i*0x10000}, v{AS[0]}")
        self.tg64(TG)
        e(f"s_mov_b32 s36, s{S_B2[0]}")
        e(f"s_and_b32 s37, s{S_B2[1]}, 0xffff")
        e(f"s_mov_b32 s38, 1024")
        e(f"s_mov_b32 s39, 0x20000")
        e(f"s_and_b32 {t0}, {S_P}, 7")
        e(f"s_lshl_b32 {t0}, {t0}, 7")
        e(f"s_lshr_b32 {t1}, {S_W}, 1")
        e(f"s_lshl_b32 {t1}, {t1}, 6")
        e(f"s_add_u32 {t0}, {t0}, {t1}")
        e(f"v_lshrrev_b32 v16, 5, v0")
        e(f"v_lshlrev_b32 v16, 3, v16")
        for q in range(4):
            e(f"buffer_load_dwordx2 v[{RX+2*q}:{RX+2*q+1}], v16, {SRD_T}, {t0} offen offset:{16*q}")
        e(f"s_lshl_b32 {t0}, {T[7]}, 7")
        e(f"s_add_u32 {t0}, {t0}, {S_FLB}")
        e(f"s_add_u32 {t0}, {t0}, {WS_FLAGS + FL3}")
        self.poll(t0, 10, 16, "FL3")
        self.stamp(12)
        e(f"s_mul_i32 {t0}, {TG}, 114688")
        e(f"s_mul_i32 {t1}, {S_LAY}, {HF_L}")
        e(f"s_add_u32 {t0}, {t0}, {t1}")
        e(f"s_lshr_b32 {t1}, {S_W}, 1")
        e(f"s_lshl_b32 {t1}, {t1}, 10")
        e(f"s_add_u32 {t0}, {t0}, {t1}")
        SA = T[5]
        e(f"s_add_u32 {SA}, {t0}, {WS_HF}")
        vq = Q(63)
        def ld(u):
            e(f"buffer_load_dwordx4 {vr(ACT+4*(u%NA))}, v1, {SRD_WS}, {SA} offen offset:{(u&1)*2048} sc1"); vq.issue(u)
            if u & 1: e(f"s_add_u32 {SA}, {SA}, 4096")
        for u in range(NA): ld(u)
        for q in range(4):
            for i in range(2):
                e(f"v_lshlrev_b32 v{accK+4*q+2*i}, 16, v{RX+2*q+i}")
                e(f"v_and_b32 v{accK+4*q+2*i+1}, 0xffff0000, v{RX+2*q+i}")
        self.barrier("B_j")
        lg = Q(15)
        def rd(u):
            sl = RING + 8 * (u % 4)
            base = W2_SLOT(u) * 4096
            for t, AA in ((0, AK), (1, AS)):
                for rdn in range(2):
                    addr = base + rdn * 1024
                    a = AA[addr >> 16]; off = addr & 0xffff
                    e(f"ds_read_b64_tr_b16 v[{sl+4*t+2*rdn}:{sl+4*t+2*rdn+1}], v{a} offset:{off}"); lg.issue((u, t, rdn))
        for u in range(3): rd(u)
        for u in range(56):
            sl = RING + 8 * (u % 4)
            if u + 3 == 39: self.barrier("Y")
            e(f"s_waitcnt vmcnt({vq.cnt(u)}) lgkmcnt({lg.cnt((u,1,1))})")
            e(f"v_mfma_f32_32x32x16_bf16 {vr(accK,16)}, {vr(sl)}, {vr(ACT+4*(u%NA))}, {vr(accK,16)}")
            if u + 3 < 56: rd(u + 3)
            c = "0" if u == 0 else vr(accS, 16)
            e(f"v_mfma_f32_32x32x16_bf16 {vr(accS,16)}, {vr(sl+4)}, {vr(ACT+4*(u%NA))}, {c}")
            if u + NA < 56: ld(u + NA)
            if u == 8: self.barrier("X1")
            if u == 16: self.barrier("X2")
        self.stamp(13)
        self.exchange(RED_W2, accS, RX, "B_k", "B_l")
        self.epilogue64(accK, RX, RED_W2, True)
        lf, ld_ = e.label("FINAL"), e.label("W2D")
        e(f"s_cmp_eq_u32 {S_LAY}, {self.nlayers-1}")
        e(f"s_cbranch_scc1 {lf}")
        e(f"""
        s_lshl_b32 {t0}, {TG}, 15
        s_and_b32 {t1}, {S_P}, 7
        s_lshl_b32 {t1}, {t1}, 12
        s_add_u32 {t0}, {t0}, {t1}
        s_lshr_b32 {t1}, {S_W}, 1
        s_lshl_b32 {t1}, {t1}, 11
        s_add_u32 {t0}, {t0}, {t1}
        s_add_u32 {t0}, {t0}, {WS_XF}
        """)
        self.store_mode([f"buffer_store_dwordx4 v[2:5], v1, {SRD_WS}, {t0} offen",
                         f"buffer_store_dwordx4 v[6:9], v1, {SRD_WS}, {t0} offen offset:1024"])
        e(f"s_mov_b32 {T[2]}, {WS_ST + 0x40000}")
        self.stats_store(TG, T[2])
        self.flag64(FL4)
        e(f"s_branch {ld_}")
        e(f"{lf}:")
        e(f"""
        v_and_b32 v20, 31, v0
        v_lshlrev_b32 v20, 10, v20
        v_lshrrev_b32 v21, 5, v0
        v_lshlrev_b32 v21, 3, v21
        v_add_u32 v20, v20, v21
        s_lshl_b32 {t0}, {TG}, 15
        s_and_b32 {t1}, {S_P}, 7
        s_lshl_b32 {t1}, {t1}, 7
        s_add_u32 {t0}, {t0}, {t1}
        s_lshr_b32 {t1}, {S_W}, 1
        s_lshl_b32 {t1}, {t1}, 6
        s_add_u32 {t0}, {t0}, {t1}
        """)
        for q in range(4):
            e(f"buffer_store_dwordx2 v[{2+2*q}:{3+2*q}], v20, {SRD_OUT}, {t0} offen offset:{16*q}")
        e(f"{ld_}:")
        self.stamp(14)

    def helper(self):
        e = self.e
        VQ, VO, VW1 = 2, 3, 4
        W1V = [4, 5, 6, 7, 8, 9, 22]
        t0, t1, t2, t3 = T[0], T[1], T[2], T[3]
        e("L_HELPER:")
        e(f"s_sub_u32 {S_H}, {S_W}, 4")
        e(f"""
        v_lshrrev_b32 v{VQ}, 2, v0
        v_mul_u32_u24 v{VQ}, 3072, v{VQ}
        v_and_b32 v12, 3, v0
        v_lshlrev_b32 v12, 4, v12
        v_add_u32 v{VQ}, v{VQ}, v12
        v_lshrrev_b32 v{VO}, 3, v0
        v_lshlrev_b32 v{VO}, 10, v{VO}
        v_lshrrev_b32 v12, 4, v0
        v_and_b32 v12, 1, v12
        v_lshlrev_b32 v12, 2, v12
        v_and_b32 v13, 7, v0
        v_xor_b32 v12, v12, v13
        v_lshlrev_b32 v12, 4, v12
        v_add_u32 v{VO}, v{VO}, v12
        """)
        for i, r in enumerate(W1V):
            e(f"v_add_u32 v12, {64*i}, v0")
            e(f"v_mul_u32_u24 v13, 4682, v12")
            e(f"v_lshrrev_b32 v13, 16, v13            ; row = G/14")
            e(f"v_mul_u32_u24 v14, 14, v13")
            e(f"v_sub_u32 v14, v12, v14               ; q")
            e(f"v_mul_u32_u24 v13, 3584, v13")
            e(f"v_lshlrev_b32 v14, 4, v14")
            e(f"v_add_u32 v{r}, v13, v14")
        li = e.label("HINIT")
        e(f"s_cmp_lg_u32 {S_H}, 3")
        e(f"s_cbranch_scc1 {li}")
        e(f"""
        v_mov_b32 v12, 0
        v_mov_b32 v13, 0
        v_mov_b32 v14, 0
        v_mov_b32 v15, 0
        s_lshl_b32 {t0}, {S_C}, 4
        s_add_u32 {t0}, {t0}, {S_P}
        s_lshl_b32 {t1}, {t0}, 10
        s_add_u32 {t1}, {t1}, {WS_KVF}
        buffer_store_dwordx4 v[12:15], v1, {SRD_WS}, {t1} offen sc1
        s_lshl_b32 {t1}, {S_P}, 8
        s_add_u32 {t1}, {t1}, {S_FLB}
        s_add_u32 {t1}, {t1}, {WS_FLAGS}
        s_mov_b32 exec_lo, 0xffff
        s_mov_b32 exec_hi, 0
        buffer_store_dwordx4 v[12:15], v1, {SRD_WS}, {t1} offen sc1
        s_mov_b64 exec, -1
        v_mov_b32 v16, 0x3f80
        v_mov_b32 v17, 0
        v_mov_b32 v18, 0
        v_mov_b32 v19, 0
        v_lshlrev_b32 v20, 7, v0
        v_add_u32 v20, {L_CONST}, v20
        s_mov_b64 exec, 15
        ds_write_b128 v20, v[16:19]
        s_mov_b64 exec, -1
        s_getreg_b32 {t2}, hwreg(HW_REG_XCC_ID)
        s_and_b32 {t2}, {t2}, 15
        s_or_b32 {t2}, {t2}, 0x80
        s_mov_b32 s36, s{S_DBG[0]}
        s_and_b32 s37, s{S_DBG[1]}, 0xffff
        s_mov_b32 s38, 256
        s_mov_b32 s39, 0x20000
        v_mov_b32 v16, {t2}
        s_waitcnt vmcnt(0) lgkmcnt(0)
        s_mov_b64 exec, 1
        buffer_store_byte v16, off, {SRD_T}, {t0} sc1
        s_mov_b64 exec, -1
        """)
        e(f"{li}:")
        e("L_HLAYER:")
        self.stamp(0)
        l3, l2, lq_end = e.label("H3Q"), e.label("H2Q"), e.label("HQE")
        e(f"s_cmp_eq_u32 {S_H}, 3")
        e(f"s_cbranch_scc1 {l3}")
        e(f"s_cmp_eq_u32 {S_H}, 2")
        e(f"s_cbranch_scc1 {l2}")
        def wq_issue():
            e(f"s_add_u32 {t0}, {S_H}, 1")
            e(f"s_lshl_b32 {t0}, {t0}, 10")
            e(f"s_cmp_eq_u32 {S_H}, 2")
            e(f"s_cselect_b32 {t0}, 0, {t0}")
            e(f"s_lshl_b32 {t1}, {S_P}, 6")
            e(f"s_add_u32 {t0}, {t0}, {t1}")
            e(f"s_lshl_b32 {t1}, {S_H}, 15")
            self.dma_loop(SRD_WQKV, VQ, t0, 16 * 3072, t1, 1024, 32)
        def cs_setup():
            e(f"""
            v_and_b32 v16, 15, v0
            v_lshrrev_b32 v16, 2, v16
            v_lshlrev_b32 v16, 6, v16
            v_lshrrev_b32 v17, 4, v0
            v_and_b32 v17, 1, v17
            v_lshlrev_b32 v17, 5, v17
            v_add_u32 v16, v16, v17
            v_and_b32 v17, 3, v0
            v_lshlrev_b32 v17, 3, v17
            v_add_u32 v16, v16, v17
            v_lshrrev_b32 v17, 5, v0
            v_lshlrev_b32 v17, 9, v17
            v_add_u32 v16, v16, v17
            s_lshl_b32 {t1}, {S_H}, 15
            v_add_u32 v12, {t1}, v16
            """)
            for r in range(48, 52): e(f"v_mov_b32 v{r}, {S_ONES}")
            for r in range(32, 48): e(f"v_mov_b32 v{r}, 0")
        def cs_chunk(c):
            for hf in range(2):
                for s in range(8 * c + 4 * hf, 8 * c + 4 * hf + 4):
                    b = 52 + 4 * (s % 4)
                    e(f"ds_read_b64_tr_b16 v[{b}:{b+1}], v12 offset:{s*1024}")
                    e(f"ds_read_b64_tr_b16 v[{b+2}:{b+3}], v12 offset:{s*1024+256}")
                for s in range(4):
                    b = 52 + 4 * s
                    e(f"s_waitcnt lgkmcnt({6-2*s})")
                    e(f"v_mfma_f32_32x32x16_bf16 v[32:47], v[48:51], v[{b}:{b+3}], v[32:47]")
        def cs_finish():
            e(f"s_nop 7"); e(f"s_nop 3")
            e(f"v_sub_f32 v16, 0, v32")
            e(f"v_cvt_pk_bf16_f32 v17, v16, v16")
            e(f"v_lshlrev_b32 v18, 16, v17")
            e(f"v_sub_f32 v18, v16, v18")
            e(f"v_cvt_pk_bf16_f32 v17, v16, v18")
            e(f"v_and_b32 v19, 31, v0")
            e(f"v_lshlrev_b32 v19, 2, v19")
            e(f"s_lshl_b32 {t1}, {S_H}, 7")
            e(f"s_add_u32 {t1}, {t1}, {L_XWQ}")
            e(f"v_add_u32 v19, {t1}, v19")
            e(f"ds_write_b32 v19, v17")
            e(f"s_waitcnt lgkmcnt(0)")
        wq_issue()
        self.stamp(8)
        lsk = e.label("HCS")
        e(f"s_cmp_eq_u32 {S_LAY}, 0")
        e(f"s_cbranch_scc0 {lsk}")
        cs_setup()
        for c in range(4):
            e(f"s_waitcnt vmcnt({24-8*c})")
            self.stamp(9+c)
            self.barrier(f"Q{c}")
            cs_chunk(c)
        cs_finish()
        self.barrier("Q4")
        self.barrier("Q5")
        e(f"s_branch {lq_end}")
        e(f"{lsk}:")
        for c in range(4):
            e(f"s_waitcnt vmcnt({24-8*c})")
            self.stamp(9+c)
            self.barrier(f"Q{c}")
        self.barrier("Q4")
        self.barrier("Q5")
        e(f"s_branch {lq_end}")
        e(f"{l2}:")
        self.barrier("Q0")
        self.stamp(7)
        wq_issue()
        self.stamp(8)
        self.barrier("Q1"); self.barrier("Q2"); self.barrier("Q3")
        lsk2 = e.label("HCS2")
        e(f"s_cmp_eq_u32 {S_LAY}, 0")
        e(f"s_cbranch_scc0 {lsk2}")
        cs_setup()
        for c in range(3):
            e(f"s_waitcnt vmcnt({24-8*c})")
            cs_chunk(c)
        e(f"s_waitcnt vmcnt(0)")
        self.barrier("Q4")
        cs_chunk(3)
        cs_finish()
        self.barrier("Q5")
        e(f"s_branch {lq_end}")
        e(f"{lsk2}:")
        e(f"s_waitcnt vmcnt(0)")
        self.stamp(12)
        self.barrier("Q4")
        self.barrier("Q5")
        e(f"s_branch {lq_end}")
        e(f"{l3}:")
        for c in range(6): self.barrier(f"Q{c}")
        lr = e.label("HRDY")
        e(f"s_cmp_eq_u32 {S_LAY}, 0")
        e(f"s_cbranch_scc0 {lr}")
        self.ready_check()
        e(f"{lr}:")
        self.halo()
        self.barrier("B_c")
        self.check_stop("qkv")
        e(f"s_branch L_ATTN")
        e(f"{lq_end}:")
        l2b, lwd = e.label("H2B"), e.label("HWD")
        e(f"s_cmp_eq_u32 {S_H}, 2")
        e(f"s_cbranch_scc1 {l2b}")
        e(f"s_and_b32 {t0}, {S_P}, 7")
        e(f"s_lshl_b32 {t0}, {t0}, 7")
        e(f"s_lshl_b32 {t1}, {S_H}, 18")
        e(f"s_add_u32 {t0}, {t0}, {t1}")
        e(f"s_lshl_b32 {t1}, {S_H}, 15")
        self.dma_loop(SRD_WO, VO, t0, 8192, t1, 1024, 32)
        e(f"s_branch {lwd}")
        e(f"{l2b}:")
        for kb in range(4): self.w1_block_static(kb, W1V)
        e(f"{lwd}:")
        self.barrier("B_c")
        self.check_stop("qkv")
        e(f"s_branch L_ATTN")
        e("L_H_POSTATTN:")
        self.w1_blocks_dyn(4, 2, W1V)
        self.barrier("B_f")
        self.barrier("B_g")
        self.check_stop("wo")
        self.w1_blocks_dyn(12, 1, W1V)
        e(f"s_waitcnt vmcnt(0)")
        self.barrier("B_h0")
        lc = e.label("HC1")
        e(f"s_cmp_eq_u32 {S_LAY}, 0")
        e(f"s_cbranch_scc0 {lc}")
        self.colsum_w1()
        e(f"{lc}:")
        self.barrier("B_h")
        self.w2_dma(0, 9, VO)
        self.barrier("B_i")
        self.check_stop("w1")
        self.w2_dma(9, 32, VO)
        self.w2_dma(32, 39, VO)
        e(f"s_waitcnt vmcnt(0)")
        self.barrier("B_j")
        self.barrier("X1")
        self.w2_dma(39, 48, VO)
        self.barrier("X2")
        self.w2_dma(48, 56, VO)
        e(f"s_waitcnt vmcnt(0)")
        self.barrier("Y")
        self.barrier("B_k")
        self.barrier("B_l")
        self.check_stop("w2")
        e(f"s_add_u32 {S_LAY}, {S_LAY}, 1")
        e(f"s_add_u32 {S_EPOCH}, {S_EPOCH}, 1")
        e(f"s_cmp_lt_u32 {S_LAY}, {self.nlayers}")
        e(f"s_cbranch_scc1 L_HLAYER")
        e(f"s_branch L_END")

    def w1_block_static(self, kb, W1V):
        e = self.e
        t0 = T[0]
        e(f"s_mul_i32 {t0}, {S_P}, 224")
        e(f"s_add_u32 {t0}, {t0}, {kb*32*3584}")
        for i, r in enumerate(W1V):
            e(f"s_mov_b32 m0, {W1_BASE(kb) + i*1024}")
            e(f"buffer_load_dwordx4 v{r}, {SRD_W1}, {t0} offen lds")
    def w1_blocks_dyn(self, kb0, per, W1V):
        e = self.e
        t0, t1 = T[0], T[1]
        e(f"s_mul_i32 {t1}, {S_H}, {per}")
        e(f"s_mul_i32 {t0}, {t1}, {32*3584}")
        e(f"s_mul_i32 {t1}, {t1}, 7168")
        e(f"s_add_u32 {t1}, {t1}, {W1_BASE(kb0)}")
        e(f"s_mul_i32 {T[2]}, {S_P}, 224")
        e(f"s_add_u32 {t0}, {t0}, {T[2]}")
        e(f"s_add_u32 {t0}, {t0}, {kb0*32*3584}")
        for b in range(per):
            for i, r in enumerate(W1V):
                e(f"s_add_u32 m0, {t1}, {b*7168 + i*1024}")
                e(f"buffer_load_dwordx4 v{r}, {SRD_W1}, {t0} offen lds")
            if b + 1 < per: e(f"s_add_u32 {t0}, {t0}, {32*3584}")
    def w2_dma(self, u0, u1, VO):
        e = self.e
        t0, t1, t2 = T[0], T[1], T[2]
        assert all(W2_SLOT(u) == W2_SLOT(u0) + (u - u0) for u in range(u0, u1))
        e(f"s_and_b32 {t0}, {S_P}, 7")
        e(f"s_lshl_b32 {t0}, {t0}, 7")
        e(f"s_lshl_b32 {t2}, {S_H}, 13")
        e(f"s_add_u32 {t0}, {t0}, {t2}")
        e(f"s_add_u32 {t0}, {t0}, {u0*32*1024}")
        e(f"s_lshl_b32 {t1}, {S_H}, 10")
        e(f"s_add_u32 {t1}, {t1}, {W2_SLOT(u0)*4096}")
        self.dma_loop(SRD_W2, VO, t0, 32 * 1024, t1, 4096, u1 - u0)

    def ready_check(self):
        e = self.e
        t0, t1, t2 = T[0], T[1], T[2]
        e(f"""
        s_lshl_b32 {t0}, {S_C}, 4
        s_add_u32 {t1}, {t0}, {S_P}
        v_mov_b32 v12, {t1}
        v_add_u32 v13, {t0}, v0
        v_cmp_gt_u32 vcc, 16, v0
        v_cndmask_b32 v12, v12, v13, vcc
        s_sub_u32 {t2}, {t1}, 16
        s_cmp_ge_u32 {S_C}, 1
        s_cselect_b32 {t2}, {t2}, {t1}
        v_mov_b32 v13, {t2}
        v_cmp_eq_u32 vcc, 16, v0
        v_cndmask_b32 v12, v12, v13, vcc
        s_sub_u32 {t2}, {t1}, 32
        s_cmp_ge_u32 {S_C}, 2
        s_cselect_b32 {t2}, {t2}, {t1}
        v_mov_b32 v13, {t2}
        v_cmp_eq_u32 vcc, 17, v0
        v_cndmask_b32 v12, v12, v13, vcc
        s_mov_b32 s36, s{S_DBG[0]}
        s_and_b32 s37, s{S_DBG[1]}, 0xffff
        s_mov_b32 s38, 256
        s_mov_b32 s39, 0x20000
        s_mov_b32 {T[19]}, 0
        """)
        l0 = e.label("RDY")
        e(f"{l0}:")
        e(f"buffer_load_ubyte v13, v12, {SRD_T}, 0 offen sc1")
        e(f"s_add_u32 {T[19]}, {T[19]}, 1")
        e(f"s_cmp_gt_u32 {T[19]}, {POLL_LIMIT}")
        e(f"s_cbranch_scc1 L_BAIL")
        e(f"s_waitcnt vmcnt(0)")
        e(f"v_cmp_gt_u32 vcc, 0x80, v13")
        e(f"s_cbranch_vccnz {l0}")
        e(f"s_getreg_b32 {t2}, hwreg(HW_REG_XCC_ID)")
        e(f"s_and_b32 {t2}, {t2}, 15")
        e(f"s_or_b32 {t2}, {t2}, 0x80")
        e(f"v_cmp_eq_u32 vcc, {t2}, v13")
        e(f"s_nop 4")
        e(f"s_and_b32 {t0}, vcc_lo, 0xffff")
        e(f"s_cmp_eq_u32 {t0}, 0xffff")
        e(f"s_cselect_b32 {t0}, 1, 0")
        e(f"v_mov_b32 v13, {t0}")
        e(f"v_mov_b32 v14, {L_MODE}")
        e(f"ds_write_b32 v14, v13")
        e(f"s_waitcnt lgkmcnt(0)")

    def halo(self):
        e = self.e
        t0, t1, t2, t3 = T[0], T[1], T[2], T[3]
        ld = e.label("HALOD")
        e(f"s_cmp_eq_u32 {S_C}, 0")
        e(f"s_cbranch_scc1 {ld}")
        e(f"""
        v_lshrrev_b32 v12, 2, v0
        v_and_b32 v12, 1, v12
        s_cmp_ge_u32 {S_C}, 2
        s_cselect_b32 {t0}, 1, 0
        v_and_b32 v12, {t0}, v12
        s_sub_u32 {t1}, {S_C}, 1
        v_sub_u32 v12, {t1}, v12
        v_lshlrev_b32 v12, 4, v12
        v_add_u32 v12, {S_P}, v12
        v_lshlrev_b32 v12, 2, v12
        v_and_b32 v13, 3, v0
        v_add_u32 v12, v12, v13
        v_lshlrev_b32 v12, 8, v12
        s_mov_b32 {t0}, {WS_KVF}
        """)
        self.poll(t0, 12, 13, "KVF")
        self.stamp(1)
        e(f"s_cmp_ge_u32 {S_C}, 2")
        e(f"s_cselect_b32 {t3}, 0, 4")
        e(f"s_lshl_b32 {t0}, {S_C}, 2")
        e(f"s_add_u32 {t0}, {t0}, {t3}")
        e(f"s_sub_u32 {t0}, {t0}, 8")
        e(f"s_lshl_b32 {t0}, {t0}, 16")
        e(f"s_lshl_b32 {t1}, {S_P}, 12")
        e(f"s_add_u32 {t0}, {t0}, {t1}")
        e(f"s_lshl_b32 {t1}, {S_LAY}, 22")
        e(f"s_add_u32 {t0}, {t0}, {t1}")
        e(f"s_add_u32 {t0}, {t0}, {WS_KV}")
        e(f"s_lshl_b32 {t1}, {t3}, 10")
        lp = e.label("HALO")
        e(f"{lp}:")
        for hd in range(2):
            for kv in range(2):
                e(f"s_add_u32 m0, {t1}, {(L_VBUF if kv else L_KBUF) + hd*12288}")
                e(f"s_add_u32 {t2}, {t0}, {hd*2048 + kv*1024}")
                e(f"buffer_load_dwordx4 v1, {SRD_WS}, {t2} offen sc1 lds")
        e(f"s_add_u32 {t0}, {t0}, 65536")
        e(f"s_add_u32 {t1}, {t1}, 1024")
        e(f"s_add_u32 {t3}, {t3}, 1")
        e(f"s_cmp_lt_u32 {t3}, 8")
        e(f"s_cbranch_scc1 {lp}")
        e(f"s_waitcnt vmcnt(0)")
        e(f"{ld}:")

    def colsum_w1(self):
        e = self.e
        t0, t1 = T[0], T[1]
        e(f"""
        v_lshrrev_b32 v16, 4, v0
        v_and_b32 v17, 1, v16
        v_lshlrev_b32 v17, 2, v17
        v_lshrrev_b32 v16, 1, v16
        v_lshlrev_b32 v16, 4, v16
        v_add_u32 v16, v16, v17
        v_and_b32 v17, 15, v0
        v_lshrrev_b32 v17, 2, v17
        v_add_u32 v16, v16, v17
        v_mul_u32_u24 v16, 224, v16
        v_and_b32 v17, 3, v0
        v_lshlrev_b32 v17, 3, v17
        v_add_u32 v16, v16, v17
        s_mov_b32 s36, s{S_B1[0]}
        s_and_b32 s37, s{S_B1[1]}, 0xffff
        s_mov_b32 s38, 3584
        s_mov_b32 s39, 0x20000
        s_mov_b32 {T[4]}, {S_H}                 ; nt
        """)
        for r in range(48, 52): e(f"v_mov_b32 v{r}, {S_ONES}")
        lp, le = e.label("CS1"), e.label("CS1E")
        e(f"{lp}:")
        e(f"s_lshl_b32 {t0}, {T[4]}, 5")
        e(f"v_add_u32 v12, {t0}, v16")
        e(f"v_add_u32 v13, 0x10000, v12")
        e(f"v_add_u32 v14, 0x20000, v12")
        e(f"s_mul_i32 {t1}, {S_P}, 224")
        e(f"s_add_u32 {t1}, {t1}, {t0}")
        e(f"v_and_b32 v17, 15, v0")
        e(f"v_lshlrev_b32 v17, 1, v17")
        e(f"buffer_load_ushort v33, v17, {SRD_T}, {t1} offen")
        for r in range(36, 40): e(f"v_mov_b32 v{r}, 0")
        for grp in range(4):
            for k in range(4):
                kb = grp * 4 + k
                b = 52 + 4 * k
                for rdn in range(2):
                    addr = W1_BASE(kb) + rdn * 8 * 224
                    a = (12, 13, 14)[addr >> 16]; off = addr & 0xffff
                    e(f"ds_read_b64_tr_b16 v[{b+2*rdn}:{b+2*rdn+1}], v{a} offset:{off}")
            for k in range(4):
                b = 52 + 4 * k
                e(f"s_waitcnt lgkmcnt({6-2*k})")
                e(f"v_mfma_f32_16x16x32_bf16 v[36:39], v[48:51], v[{b}:{b+3}], v[36:39]")
        e(f"s_nop 7")
        e(f"v_sub_f32 v18, 0, v36")
        e(f"v_cvt_pk_bf16_f32 v19, v18, v18")
        e(f"v_lshlrev_b32 v20, 16, v19")
        e(f"v_sub_f32 v20, v18, v20")
        e(f"v_cvt_pk_bf16_f32 v32, v18, v20")
        e(f"v_lshlrev_b32 v17, 2, v17               ; (l&15)*8")
        e(f"s_lshl_b32 {t0}, {T[4]}, 7")
        e(f"s_add_u32 {t0}, {t0}, {L_XW1}")
        e(f"v_add_u32 v17, {t0}, v17")
        e(f"s_waitcnt vmcnt(0)")
        e(f"ds_write_b64 v17, v[32:33]")
        e(f"s_add_u32 {T[4]}, {T[4]}, 4")
        e(f"s_cmp_lt_u32 {T[4]}, 7")
        e(f"s_cbranch_scc1 {lp}")
        e(f"s_waitcnt lgkmcnt(0)")

    def finish(self):
        e = self.e
        e("L_BAIL:")
        e("s_mov_b64 exec, -1")
        e("L_END:")
        if self.stamps:
            e(f"s_cmp_ge_u32 s2, 256")
            e(f"s_cbranch_scc1 L_END2")
            e(f"s_lshl_b32 {T[0]}, s2, 3")
            e(f"s_add_u32 {T[0]}, {T[0]}, {S_W}")
            e(f"s_lshl_b32 {T[0]}, {T[0]}, 8")
            e(f"s_add_u32 {T[0]}, {T[0]}, {WS_STAMP}")
            e(f"v_lshlrev_b32 v12, 2, v0")
            e(f"buffer_store_dword v11, v12, {SRD_WS}, {T[0]} offen")
            e("L_END2:")
        e("s_endpgm")

    def build(self):
        e = self.e
        hdr = f"""; Persistent fused 2-layer transformer block (sliding-window attention + squared-relu MLP), gfx950
; @launch grid=(256,1,1) block=(512,1,1) lds={LDS_TOTAL}
.amdgcn_target "amdgcn-amd-amdhsa--gfx950"
.text
.globl {KNAME}
.p2align 8
.type {KNAME},@function
{KNAME}:
"""
        self.prologue()
        self.compute()
        self.helper()
        self.finish()
        tail = f"""
.section .rodata,"a"
.p2align 6
.amdhsa_kernel {KNAME}
  .amdhsa_next_free_vgpr 256
  .amdhsa_next_free_sgpr 102
  .amdhsa_accum_offset 256
  .amdhsa_group_segment_fixed_size 0
  .amdhsa_kernarg_size 88
  .amdhsa_user_sgpr_count 2
  .amdhsa_user_sgpr_kernarg_segment_ptr 1
  .amdhsa_system_sgpr_workgroup_id_x 1
.end_amdhsa_kernel
"""
        return hdr + e.text() + tail

if __name__ == "__main__":
    import argparse
    ap = argparse.ArgumentParser()
    ap.add_argument("-o", default="k.s")
    ap.add_argument("--stop", default=None)
    ap.add_argument("--stamps", action="store_true")
    ap.add_argument("--slow", action="store_true")
    a = ap.parse_args()
    stop = None
    if a.stop:
        n, l = a.stop.split(":"); stop = (n, int(l))
    g = Gen(stop=stop, stamps=a.stamps, force_slow=a.slow)
    txt = g.build()
    open(a.o, "w").write(txt)
    print("instructions:", g.e.nins, "nop states added:", g.e.nops_added, "bytes of text:", len(txt))
```

```python
import sys
from emit import Emit

KNAME = "interleave_layers__sliding_block__dense_activation_squared_relu__prompt_kernel"

L_WQ = [0, 32768, 65536]
L_KBUF, L_VBUF, L_QBUF = 98304, 122880, 147456
def W1_BASE(kb):
    if kb < 4: return 65536 + 7168 * kb
    if kb < 12: return 98304 + 7168 * (kb - 4)
    return 7168 * (kb - 12)
def W2_SLOT(u):
    if u < 9: return 7 + u
    if u < 32: return u + 7
    if u < 39: return u - 32
    if u < 48: return 7 + (u - 39)
    return 16 + (u - 48)
RED_WO, RED_W2 = 32768, 106496
PERS = 159744
L_CONST = PERS
L_XWQ = PERS + 512
L_XW1 = PERS + 1024
L_MODE = PERS + 2048
LDS_TOTAL = 163840

WS_FLAGS = 0x0
WS_KVF = 0x10000
WS_ST = 0x80000
WS_STAMP = 0x200000
WS_XF = 0x400000
WS_X1 = 0x600000
WS_OF = 0xA00000
WS_KV = 0xE00000
WS_HF = 0x1600000
HF_L = 0x700000
FL1, FL2, FL3, FL4 = 0, 1024, 1536, 2048

S_LAY, S_C, S_P, S_W, S_FAST = "s3", "s4", "s5", "s6", "s7"
SRD_X, SRD_WQKV, SRD_WO, SRD_W1, SRD_W2, SRD_WS, SRD_OUT, SRD_T = (
    "s[8:11]", "s[12:15]", "s[16:19]", "s[20:23]", "s[24:27]", "s[28:31]", "s[32:35]", "s[36:39]")
S_B2, S_B1, S_DBG = (40, 41), (42, 43), (44, 45)
S_EPOCH = "s46"
S_FLB = "s47"
MASK0 = 48
T = [f"s{i}" for i in range(80, 100)]
S_ONES = "s100"
S_H = "s101"

POLL_LIMIT = 100000

class Q:
    def __init__(self, maxn):
        self.n = 0; self.tags = {}; self.maxn = maxn
    def issue(self, tag=None):
        self.n += 1
        if tag is not None: self.tags[tag] = self.n
    def cnt(self, tag):
        return min(self.n - self.tags[tag], self.maxn)
    def reset(self):
        self.n = 0; self.tags = {}

def vr(a, n=4):
    return f"v[{a}:{a+n-1}]"

class Gen:
    def __init__(self, stop=None, stamps=False, force_slow=False, nlayers=2, params=None):
        self.e = Emit()
        self.stop = stop
        self.stamps = stamps
        self.force_slow = force_slow
        self.nlayers = nlayers
        self.nstamp = 0
        self.deferred = []
        self.P = params or {}
    def stamp(self, idx):
        if not self.stamps: return
        e = self.e
        e(f"s_memtime s[98:99]")
        e(f"s_lshl_b32 s97, {S_LAY}, 5")
        e(f"s_add_u32 m0, s97, {idx}")
        e(f"s_waitcnt lgkmcnt(0)")
        e(f"v_writelane_b32 v11, s98, m0")
    def srd(self, dst, lo, hi, size):
        e = self.e
        d = int(dst[2:dst.index(":")])
        e(f"s_mov_b32 s{d}, s{lo}")
        e(f"s_and_b32 s{d+1}, s{hi}, 0xffff")
        e(f"s_mov_b32 s{d+2}, {size}")
        e(f"s_mov_b32 s{d+3}, 0x20000")
    def barrier(self, name=""):
        self.e(f"s_barrier ; {name}")
    def poll(self, s_addr, voff, vtmp, nm):
        e = self.e
        l0, l1 = e.label("POLL"), e.label("POLLOK")
        cnt = T[19]
        e(f"s_mov_b32 {cnt}, 0")
        e(f"{l0}:")
        e(f"buffer_load_dword v{vtmp}, v{voff}, {SRD_WS}, {s_addr} offen sc1")
        e(f"s_add_u32 {cnt}, {cnt}, 1")
        e(f"s_cmp_gt_u32 {cnt}, {POLL_LIMIT}")
        e(f"s_cbranch_scc1 L_BAIL")
        e(f"s_waitcnt vmcnt(0)")
        e(f"v_cmp_gt_u32 vcc, {S_EPOCH}, v{vtmp}")
        e(f"s_cbranch_vccnz {l0}")
        e(f"{l1}:")
    def store_mode(self, text):
        e = self.e
        if isinstance(text, str): text = [text]
        if self.force_slow:
            for t in text: e(t + " sc1")
            return
        ls, ld = e.label("SLOW"), e.label("SDONE")
        e(f"s_cmp_eq_u32 {S_FAST}, 0")
        e(f"s_cbranch_scc1 {ls}")
        for t in text: e(t)
        e(f"s_branch {ld}")
        e(f"{ls}:")
        for t in text: e(t + " sc1")
        e(f"{ld}:")
    def flag_store(self, s_addr, vt, always_sc1=False):
        e = self.e
        e(f"v_mov_b32 v{vt}, {S_EPOCH}")
        e(f"s_mov_b64 exec, 1")
        t = f"buffer_store_dword v{vt}, off, {SRD_WS}, {s_addr}"
        if always_sc1: e(t + " sc1")
        else: self.store_mode(t)
        e(f"s_mov_b64 exec, -1")
    def dma_loop(self, srd, voff, s_soff, soff_stride, s_lds, lds_stride, count, flags=""):
        e = self.e
        if count <= 0: return
        lp = e.label("DMA")
        c = T[18]
        e(f"s_mov_b32 {c}, {count}")
        e(f"{lp}:")
        e(f"s_mov_b32 m0, {s_lds}")
        e(f"s_add_u32 {s_lds}, {s_lds}, {lds_stride}")
        e(f"buffer_load_dwordx4 v{voff}, {srd}, {s_soff} offen {flags} lds")
        e(f"s_add_u32 {s_soff}, {s_soff}, {soff_stride}")
        e(f"s_sub_u32 {c}, {c}, 1")
        e(f"s_cmp_lg_u32 {c}, 0")
        e(f"s_cbranch_scc1 {lp}")
    def check_stop(self, name, lay=None):
        if self.stop is None or self.stop[0] != name: return
        e = self.e
        e(f"s_cmp_eq_u32 {S_LAY}, {self.stop[1]}")
        e(f"s_cbranch_scc1 L_END")

    def prologue(self):
        e = self.e
        e(f"""
        s_cmp_ge_u32 s2, 256
        s_cbranch_scc1 L_END
        s_load_dwordx16 s[64:79], s[0:1], 0
        s_load_dwordx4 s[80:83], s[0:1], 64
        s_load_dwordx2 s[84:85], s[0:1], 80
        v_lshrrev_b32 v1, 6, v0
        v_and_b32 v0, 63, v0
        v_readfirstlane_b32 {S_W}, v1
        s_and_b32 {S_C}, s2, 7
        s_lshl_b32 {S_C}, {S_C}, 1
        s_lshr_b32 {S_P}, s2, 3
        s_lshr_b32 s46, {S_P}, 4
        s_add_u32 {S_C}, {S_C}, s46
        s_and_b32 {S_P}, {S_P}, 15
        s_mov_b32 {S_LAY}, 0
        s_mov_b32 {S_EPOCH}, 1
        s_mov_b32 {S_FAST}, 0
        s_lshl_b32 {S_FLB}, {S_C}, 12
        s_mov_b32 {S_ONES}, 0x3f803f80
        v_lshlrev_b32 v1, 4, v0
        v_and_b32 v10, 15, v0
        v_lshlrev_b32 v10, 2, v10
        v_mov_b32 v11, 0
        s_waitcnt lgkmcnt(0)
        """)
        self.srd(SRD_X, 64, 65, 2048 * 512 * 2)
        self.srd(SRD_WQKV, 66, 67, 512 * 1536 * 2)
        self.srd(SRD_WO, 68, 69, 512 * 512 * 2)
        self.srd(SRD_W1, 72, 73, 512 * 1792 * 2)
        self.srd(SRD_W2, 76, 77, 1792 * 512 * 2)
        self.srd(SRD_WS, 84, 85, 0x10000000)
        self.srd(SRD_OUT, 80, 81, 2048 * 512 * 2)
        e(f"""
        s_mov_b32 s{S_B2[0]}, s78
        s_mov_b32 s{S_B2[1]}, s79
        s_mov_b32 s{S_B1[0]}, s74
        s_mov_b32 s{S_B1[1]}, s75
        s_mov_b32 s{S_DBG[0]}, s82
        s_mov_b32 s{S_DBG[1]}, s83
        """)
        e(f"""
        v_and_b32 v2, 31, v0
        v_lshrrev_b32 v3, 5, v0
        v_lshlrev_b32 v3, 2, v3
        v_sub_u32 v2, v2, v3
        """)
        for r in range(16):
            k = (r & 3) + 8 * (r >> 2)
            e(f"v_cmp_le_i32 s[{MASK0+2*r}:{MASK0+2*r+1}], {k}, v2")
        e(f"s_cmp_ge_u32 {S_W}, 4")
        e(f"s_cbranch_scc1 L_HELPER")

    def stats_finalize(self, vS, vQ, t0, out_pm, out_ps, out_rstd):
        e = self.e
        a, b, c_, d = t0, t0 + 1, t0 + 2, t0 + 3
        e(f"v_mov_b32 v{a}, v{vS}")
        e(f"v_mov_b32 v{b}, v{vQ}")
        e(f"v_permlane32_swap_b32 v{vS}, v{a}")
        e(f"v_permlane32_swap_b32 v{vQ}, v{b}")
        e(f"v_add_f32 v{vS}, v{vS}, v{a}")
        e(f"v_add_f32 v{vQ}, v{vQ}, v{b}")
        e(f"v_mul_f32 v{vS}, 0x3b000000, v{vS}")
        e(f"v_mul_f32 v{vQ}, 0x3b000000, v{vQ}")
        e(f"v_fma_f32 v{vQ}, -v{vS}, v{vS}, v{vQ}")
        e(f"v_max_f32 v{vQ}, 0, v{vQ}")
        e(f"v_cvt_pk_bf16_f32 v{out_pm}, v{vS}, v{vS}")
        e(f"v_cvt_pk_bf16_f32 v{a}, v{vQ}, v{vQ}")
        e(f"v_lshlrev_b32 v{a}, 16, v{a}")
        e(f"v_add_f32 v{a}, 0x3727c5ac, v{a}")
        e(f"v_cvt_pk_bf16_f32 v{a}, v{a}, v{a}")
        e(f"v_lshlrev_b32 v{a}, 16, v{a}")
        e(f"v_sqrt_f32 v{a}, v{a}")
        e(f"v_cvt_pk_bf16_f32 v{out_ps}, v{a}, v{a}")
        e(f"v_lshlrev_b32 v{a}, 16, v{out_ps}")
        e(f"v_rcp_f32 v{out_rstd}, v{a}")

    def sum_partials(self, base, vS, vQ):
        e = self.e
        b = base
        e(f"v_pk_add_f32 v[{b}:{b+1}], v[{b}:{b+1}], v[{b+2}:{b+3}]")
        e(f"v_pk_add_f32 v[{b+4}:{b+5}], v[{b+4}:{b+5}], v[{b+6}:{b+7}]")
        e(f"v_pk_add_f32 v[{b+8}:{b+9}], v[{b+8}:{b+9}], v[{b+10}:{b+11}]")
        e(f"v_pk_add_f32 v[{b+12}:{b+13}], v[{b+12}:{b+13}], v[{b+14}:{b+15}]")
        e(f"v_pk_add_f32 v[{b}:{b+1}], v[{b}:{b+1}], v[{b+4}:{b+5}]")
        e(f"v_pk_add_f32 v[{b+8}:{b+9}], v[{b+8}:{b+9}], v[{b+12}:{b+13}]")
        e(f"v_pk_add_f32 v[{b}:{b+1}], v[{b}:{b+1}], v[{b+8}:{b+9}]")
        assert vS == b and vQ == b + 1

    def compute(self):
        e = self.e
        t0, t1, t2 = T[0], T[1], T[2]
        e(f"""
        s_lshr_b32 {t0}, {S_P}, 3
        s_lshl_b32 {t0}, {t0}, 6
        s_and_b32 {t1}, {S_W}, 1
        s_lshl_b32 {t1}, {t1}, 5
        s_add_u32 {t0}, {t0}, {t1}
        s_lshl_b32 {t1}, {S_C}, 7
        s_add_u32 {t0}, {t0}, {t1}
        s_lshl_b32 {t0}, {t0}, 10
        s_and_b32 {t1}, {S_P}, 7
        s_lshl_b32 {t1}, {t1}, 7            ; 64j*2
        s_add_u32 {t0}, {t0}, {t1}
        s_lshr_b32 {t1}, {S_W}, 1
        s_lshl_b32 {t1}, {t1}, 6            ; 32kh*2
        s_add_u32 {t0}, {t0}, {t1}
        v_and_b32 v12, 31, v0
        v_lshlrev_b32 v12, 10, v12
        v_lshrrev_b32 v13, 5, v0
        v_lshlrev_b32 v13, 3, v13
        v_add_u32 v12, v12, v13
        """)
        for q in range(4):
            e(f"buffer_load_dwordx2 v[{2+2*q}:{3+2*q}], v12, {SRD_X}, {t0} offen offset:{16*q}")
        if self.stamps:
            e(f"s_memrealtime s[98:99]")
            e(f"s_waitcnt lgkmcnt(0)")
            e(f"v_writelane_b32 v11, s98, 31")
        e("L_CLAYER:")
        self.stamp(0)
        self.qkv_compute()
        self.check_stop("qkv")
        e("L_ATTN:")
        self.attention(helper=False)
        self.check_stop("attn")
        e(f"s_cmp_ge_u32 {S_W}, 4")
        e(f"s_cbranch_scc1 L_H_POSTATTN")
        self.wo_compute()
        self.check_stop("wo")
        self.w1_compute()
        self.check_stop("w1")
        self.w2_compute()
        self.check_stop("w2")
        e(f"s_add_u32 {S_LAY}, {S_LAY}, 1")
        e(f"s_add_u32 {S_EPOCH}, {S_EPOCH}, 1")
        e(f"s_cmp_lt_u32 {S_LAY}, {self.nlayers}")
        e(f"s_cbranch_scc1 L_CLAYER")
        e(f"s_branch L_END")

    def qkv_compute(self):
        e = self.e
        ACT = 128; accK, accV, accQ = 80, 96, 112; RING = 48
        A1, A2, A1Q, A2Q = 12, 13, 14, 15
        t0, t1, t2, t3 = T[0], T[1], T[2], T[3]
        TG = T[6]
        NPRE = self.P.get('qkv_pre', 16)
        e(f"""
        v_and_b32 v16, 15, v0
        v_lshrrev_b32 v16, 2, v16
        v_lshlrev_b32 v16, 6, v16
        v_lshrrev_b32 v17, 4, v0
        v_and_b32 v17, 1, v17
        v_lshlrev_b32 v17, 5, v17
        v_add_u32 v16, v16, v17
        v_and_b32 v17, 3, v0
        v_lshlrev_b32 v17, 3, v17
        v_add_u32 v16, v16, v17
        v_lshrrev_b32 v17, 5, v0
        s_movk_i32 {t2}, 256
        s_movk_i32 {t3}, 512
        s_cmp_eq_u32 {S_LAY}, 0
        s_cselect_b32 {t0}, {t3}, {t2}
        s_cselect_b32 {t1}, {t2}, {t3}
        v_mul_lo_u32 v17, v17, {t0}
        v_add_u32 v{A1}, v16, v17
        v_add_u32 v{A2}, {t1}, v{A1}
        v_add_u32 v{A1Q}, 0x10000, v{A1}
        v_add_u32 v{A2Q}, 0x10000, v{A2}
        v_and_b32 v44, 31, v0
        v_lshlrev_b32 v44, 2, v44
        v_add_u32 v44, {L_XWQ}, v44
        """)
        lx, ld = e.label("QX"), e.label("QLD")
        e(f"s_lshl_b32 {TG}, {S_C}, 2")
        e(f"s_add_u32 {TG}, {TG}, {S_W}          ; tg")
        e(f"s_cmp_eq_u32 {S_LAY}, 0")
        e(f"s_cbranch_scc1 {lx}")
        e(f"s_lshl_b32 {t0}, {S_W}, 7")
        e(f"s_add_u32 {t0}, {t0}, {S_FLB}")
        e(f"s_add_u32 {t0}, {t0}, {WS_FLAGS + FL4}")
        e(f"s_sub_u32 {S_EPOCH}, {S_EPOCH}, 1")
        self.poll(t0, 10, 16, "FL4")
        e(f"s_add_u32 {S_EPOCH}, {S_EPOCH}, 1")
        self.stamp(1)
        SA = T[5]
        e(f"s_lshl_b32 {SA}, {TG}, 15")
        e(f"s_add_u32 {SA}, {SA}, {WS_XF}")
        vq = Q(63)
        def ld_act(s):
            e(f"buffer_load_dwordx4 {vr(ACT+4*s)}, v1, {SRD_WS}, {SA} offen offset:{(s&3)*1024} sc1"); vq.issue(s)
            if (s & 3) == 3 and s < 31:
                e(f"s_add_u32 {SA}, {SA}, 4096")
        for s in range(4): ld_act(s)
        e(f"s_lshl_b32 {t0}, {TG}, 12")
        e(f"s_add_u32 {t0}, {t0}, {WS_ST + 0x40000}")
        for u in range(4):
            e(f"buffer_load_dwordx4 {vr(16+4*u)}, v1, {SRD_WS}, {t0} offen offset:{u*1024} sc1"); vq.issue(("st", u))
        for s in range(4, NPRE): ld_act(s)
        e(f"s_mov_b64 vcc, 0")
        e(f"s_branch {ld}")
        e(f"{lx}:")
        STG = L_KBUF
        e(f"""
        v_lshrrev_b32 v16, 3, v0
        v_lshlrev_b32 v17, 10, v16
        v_and_b32 v18, 7, v0
        v_lshlrev_b32 v19, 4, v18
        v_add_u32 v20, v17, v19
        s_lshl_b32 {t0}, {TG}, 15
        s_add_u32 {t1}, {t0}, 8192
        s_add_u32 {t2}, {t0}, 16384
        s_add_u32 {t3}, {t0}, 24576
        """)
        for ch in range(8):
            for rb, sr in enumerate((t0, t1, t2, t3)):
                e(f"buffer_load_dwordx4 {vr(ACT+16*ch+4*rb)}, v20, {SRD_X}, {sr} offen offset:{128*ch}")
        e(f"""
        v_lshrrev_b32 v17, 4, v0
        v_xor_b32 v17, v17, v18
        v_lshlrev_b32 v17, 4, v17
        v_lshlrev_b32 v16, 7, v16
        v_add_u32 v16, v16, v17
        s_lshl_b32 {t0}, {S_W}, 12
        s_add_u32 {t0}, {t0}, {STG}
        v_add_u32 v21, {t0}, v16
        v_xor_b32 v22, 64, v21
        v_and_b32 v16, 31, v0
        v_lshrrev_b32 v17, 1, v16
        v_and_b32 v17, 7, v17
        v_lshrrev_b32 v18, 5, v0
        v_xor_b32 v17, v17, v18
        v_lshlrev_b32 v17, 4, v17
        v_lshlrev_b32 v16, 7, v16
        v_add_u32 v16, v16, v17
        v_add_u32 v23, {t0}, v16
        v_xor_b32 v24, 32, v23
        v_xor_b32 v25, 64, v23
        v_xor_b32 v26, 96, v23
        """)
        for ch in range(8):
            e(f"s_waitcnt vmcnt({28-4*ch})")
            for rb in range(4):
                e(f"ds_write_b128 v{21+(rb&1)}, {vr(ACT+16*ch+4*rb)} offset:{rb*1024}")
            for sp in range(4):
                e(f"ds_read_b128 {vr(ACT+16*ch+4*sp)}, v{23+sp}")
        for r in range(16, 20):
            e(f"v_mov_b32 v{r}, 0")
        e(f"s_waitcnt lgkmcnt(0)")
        e(f"s_mov_b64 vcc, -1")
        e(f"{ld}:")
        self.stamp(15)
        lg = Q(15)
        def rd_kv(s):
            sl = RING + 8 * (s % 4)
            for t, off in ((0, 0), (1, 32768)):
                e(f"ds_read_b64_tr_b16 v[{sl+4*t}:{sl+4*t+1}], v{A1} offset:{off + s*1024}"); lg.issue()
                e(f"ds_read_b64_tr_b16 v[{sl+4*t+2}:{sl+4*t+3}], v{A2} offset:{off + s*1024}"); lg.issue((s, t))
        PM, PS, RSTD = 28, 29, 30
        outl = []
        self.barrier("Q0")
        self.stamp(16)
        for s in range(3): rd_kv(s)
        for s in range(32):
            sl = RING + 8 * (s % 4)
            if s + 3 < 32 and (s + 3) % 8 == 0:
                self.barrier(f"Q{(s+3)//8}")
            e(f"s_waitcnt vmcnt({vq.cnt(s)}) lgkmcnt({lg.cnt((s,1))})")
            c = "0" if s == 0 else vr(accK, 16)
            e(f"v_mfma_f32_32x32x16_bf16 {vr(accK,16)}, {vr(sl)}, {vr(ACT+4*s)}, {c}")
            if s + 3 < 32: rd_kv(s + 3)
            c = "0" if s == 0 else vr(accV, 16)
            e(f"v_mfma_f32_32x32x16_bf16 {vr(accV,16)}, {vr(sl+4)}, {vr(ACT+4*s)}, {c}")
            lo, lb = e.label("DOT"), e.label("DOTB")
            e(f"s_cbranch_vccnz {lo}")
            if s + NPRE < 32: ld_act(s + NPRE)
            e(f"{lb}:")
            outl.append((lo, lb, s))
        self.barrier("Q4")
        self.stamp(2)
        lg.reset()
        def rd_q(s):
            sl = RING + 4 * (s % 8)
            e(f"ds_read_b64_tr_b16 v[{sl}:{sl+1}], v{A1Q} offset:{s*1024}"); lg.issue()
            e(f"ds_read_b64_tr_b16 v[{sl+2}:{sl+3}], v{A2Q} offset:{s*1024}"); lg.issue(("q", s))
        XA, XB, EB = 32, 36, 40
        e(f"ds_read_b32 v{XA}, v44"); lg.issue("xk")
        e(f"ds_read_b32 v{XB}, v44 offset:128"); lg.issue("xv")
        for s in range(5): rd_q(s)
        l0, l1 = e.label("ST0"), e.label("ST1")
        e(f"s_cmp_eq_u32 {S_LAY}, 0")
        e(f"s_cbranch_scc1 {l0}")
        self.sum_partials(16, 16, 17)
        e(f"s_branch {l1}")
        e(f"{l0}:")
        e(f"s_nop 3")
        e(f"v_add_f32 v16, v16, v17")
        e(f"v_add_f32 v17, v18, v19")
        e(f"{l1}:")
        self.stats_finalize(16, 17, 20, PM, PS, RSTD)
        for r in (XA+1, XA+2, XA+3, XB+1, XB+2, XB+3, EB+1, EB+2, EB+3):
            e(f"v_mov_b32 v{r}, 0")
        e(f"v_cmp_gt_u32 vcc, 32, v0")
        e(f"v_cndmask_b32 v{EB}, 0, v{PM}, vcc")
        e(f"s_waitcnt lgkmcnt({lg.cnt('xv')})")
        e(f"v_mfma_f32_32x32x16_bf16 {vr(accK,16)}, {vr(XA)}, {vr(EB)}, {vr(accK,16)}")
        e(f"v_mfma_f32_32x32x16_bf16 {vr(accV,16)}, {vr(XB)}, {vr(EB)}, {vr(accV,16)}")
        e(f"s_lshl_b32 {t0}, {S_W}, 10")
        e(f"s_add_u32 {t0}, {t0}, {L_KBUF + 8*1024}")
        e(f"v_add_u32 v45, {t0}, v1")
        e(f"s_lshl_b32 {t0}, {TG}, 16")
        e(f"s_lshl_b32 {t1}, {S_P}, 12")
        e(f"s_add_u32 {t0}, {t0}, {t1}")
        e(f"s_lshl_b32 {t1}, {S_LAY}, 22")
        e(f"s_add_u32 {t0}, {t0}, {t1}")
        e(f"s_add_u32 {t0}, {t0}, {WS_KV}")
        PK = 68
        for kv, acc, lbuf in ((0, accK, 0), (1, accV, L_VBUF - L_KBUF)):
            for i in range(8):
                e(f"v_pk_mul_f32 v[{acc+2*i}:{acc+2*i+1}], v[{acc+2*i}:{acc+2*i+1}], v[{RSTD}:{RSTD+1}] op_sel_hi:[1,0]")
            for i in range(8):
                e(f"v_cvt_pk_bf16_f32 v{PK+i}, v{acc+2*i}, v{acc+2*i+1}")
            for hd in range(2):
                e(f"buffer_store_dwordx4 {vr(PK+4*hd)}, v1, {SRD_WS}, {t0} offen offset:{hd*2048 + kv*1024} sc1")
                e(f"ds_write_b128 v45, {vr(PK+4*hd)} offset:{lbuf + hd*12288}"); lg.issue()
        self.stamp(17)
        e(f"s_lshl_b32 {t0}, {S_C}, 4")
        e(f"s_add_u32 {t0}, {t0}, {S_P}")
        e(f"s_lshl_b32 {t0}, {t0}, 2")
        e(f"s_add_u32 {t0}, {t0}, {S_W}")
        e(f"s_lshl_b32 {t0}, {t0}, 8")
        e(f"s_add_u32 {t0}, {t0}, {WS_KVF}")
        for s in range(5, 7): rd_q(s)
        for s in range(32):
            sl = RING + 4 * (s % 8)
            e(f"s_waitcnt lgkmcnt({lg.cnt(('q', s))})")
            c = "0" if s == 0 else vr(accQ, 16)
            e(f"v_mfma_f32_32x32x16_bf16 {vr(accQ,16)}, {vr(sl)}, {vr(ACT+4*s)}, {c}")
            if s + 7 < 32: rd_q(s + 7)
            if s == 27:
                e(f"s_waitcnt vmcnt(0)")
                self.flag_store(t0, 22, always_sc1=True)
        self.barrier("Q5")
        self.stamp(3)
        e(f"ds_read_b32 v{XA}, v44 offset:256")
        e(f"v_mul_f32 v{RSTD}, 0x3eb8aa3b, v{RSTD}")
        e(f"s_lshl_b32 {t0}, {S_W}, 10")
        e(f"s_add_u32 {t0}, {t0}, {L_QBUF}")
        e(f"v_add_u32 v45, {t0}, v1")
        e(f"s_waitcnt lgkmcnt(0)")
        e(f"v_mfma_f32_32x32x16_bf16 {vr(accQ,16)}, {vr(XA)}, {vr(EB)}, {vr(accQ,16)}")
        for i in range(8):
            e(f"v_pk_mul_f32 v[{accQ+2*i}:{accQ+2*i+1}], v[{accQ+2*i}:{accQ+2*i+1}], v[{RSTD}:{RSTD+1}] op_sel_hi:[1,0]")
        for i in range(8):
            e(f"v_cvt_pk_bf16_f32 v{PK+i}, v{accQ+2*i}, v{accQ+2*i+1}")
        for hd in range(2):
            e(f"ds_write_b128 v45, {vr(PK+4*hd)} offset:{hd*4096}")
        e(f"s_waitcnt lgkmcnt(0)")
        self.barrier("B_c")
        self.stamp(4)
        self.deferred.append(("qkvdot", outl, ACT))

    def attention(self, helper):
        e = self.e
        S0 = 64
        KF = 208
        QF = 244
        OA = 32
        PP = 48
        AK, AV, VST, MX, TM = 12, 13, 14, 15, 16
        t0, t1, t2, t3 = T[0], T[1], T[2], T[3]
        NSK = T[4]
        e(f"v_mov_b32 v16, {L_MODE}")
        e(f"ds_read_b32 v17, v16")
        e(f"s_and_b32 {t0}, {S_W}, 3")
        e(f"s_lshr_b32 {t1}, {S_W}, 2")
        e(f"s_mul_i32 {t2}, {t1}, 12288")
        e(f"s_lshl_b32 {t3}, {t0}, 10")
        e(f"s_add_u32 {t2}, {t2}, {t3}               ; hd*12288 + w*1024")
        e(f"s_add_u32 {t3}, {t2}, {L_KBUF}")
        e(f"v_add_u32 v{AK}, {t3}, v1")
        e(f"s_lshl_b32 {t1}, {t1}, 12")
        e(f"s_lshl_b32 {t3}, {t0}, 10")
        e(f"s_add_u32 {t1}, {t1}, {t3}")
        e(f"s_add_u32 {t1}, {t1}, {L_QBUF}")
        e(f"v_add_u32 v18, {t1}, v1")
        e(f"ds_read_b128 {vr(QF)}, v18")
        e(f"s_lshl_b32 {t3}, {S_C}, 2")
        e(f"s_add_u32 {t3}, {t3}, {t0}")
        e(f"s_sub_i32 {NSK}, 8, {t3}")
        e(f"s_max_i32 {NSK}, {NSK}, 0")
        for i in range(9):
            e(f"ds_read_b128 {vr(KF+4*i)}, v{AK} offset:{i*1024}")
        e(f"""
        v_and_b32 v18, 1, v0
        v_lshlrev_b32 v18, 9, v18
        v_lshrrev_b32 v19, 5, v0
        v_lshlrev_b32 v19, 2, v19
        v_and_b32 v20, 15, v0
        v_lshrrev_b32 v20, 2, v20
        v_add_u32 v19, v19, v20
        v_lshlrev_b32 v19, 4, v19
        v_add_u32 v18, v18, v19
        v_lshrrev_b32 v19, 1, v0
        v_and_b32 v19, 1, v19
        v_lshlrev_b32 v19, 3, v19
        v_add_u32 v18, v18, v19
        s_add_u32 {t2}, {t2}, {L_VBUF}
        v_add_u32 v18, {t2}, v18
        v_add_u32 v19, {L_CONST}, v19
        v_and_b32 v20, 16, v0
        v_cmp_eq_u32 vcc, 0, v20
        v_mov_b32 v21, 1024
        v_cndmask_b32 v{AV}, v19, v18, vcc
        v_cndmask_b32 v{VST}, 0, v21, vcc
        """)
        e(f"s_waitcnt lgkmcnt(0)")
        e(f"v_readfirstlane_b32 {S_FAST}, v17")
        for i in range(9):
            if i < 8:
                lk, ld = e.label("SINV"), e.label("SOK")
                e(f"s_cmp_gt_i32 {NSK}, {i}")
                e(f"s_cbranch_scc1 {lk}")
                e(f"v_mfma_f32_32x32x16_bf16 {vr(S0+16*i,16)}, {vr(KF+4*i)}, {vr(QF)}, 0")
                e(f"s_branch {ld}")
                e(f"{lk}:")
                for r in range(16):
                    e(f"v_mov_b32 v{S0+16*i+r}, 0xff800000")
                e(f"{ld}:")
            else:
                e(f"v_mfma_f32_32x32x16_bf16 {vr(S0+16*i,16)}, {vr(KF+4*i)}, {vr(QF)}, 0")
        for r in range(16):
            e(f"v_mov_b32 v{OA+r}, 0")
        e(f"s_nop 7")
        e(f"s_nop 7")
        S8, Sf = S0 + 128, S0
        for r in range(16):
            e(f"v_cndmask_b32 v{S8+r}, v{Sf+r}, v{S8+r}, s[{MASK0+2*r}:{MASK0+2*r+1}]")
        self.stamp(20)
        lg = Q(15)
        e(f"v_add_u32 v{AV}, v{AV}, v{VST}")
        def rd_v(slot, tag):
            b = KF + 8 * slot
            for half in range(2):
                e(f"ds_read_b64_tr_b16 v[{b+4*half}:{b+4*half+1}], v{AV} offset:{half*256}"); lg.issue()
                e(f"ds_read_b64_tr_b16 v[{b+4*half+2}:{b+4*half+3}], v{AV} offset:{half*256+128}"); lg.issue((tag, half))
        rd_v(0, 1)
        e(f"v_add_u32 v{AV}, v{AV}, v{VST}")
        rd_v(1, 2)
        vals = [S0 + 16 * i + r for i in range(1, 9) for r in range(16)]
        ch = [MX, TM, TM + 1, TM + 2]
        for c4 in range(4):
            part = vals[c4 * 32:(c4 + 1) * 32]
            e(f"v_max3_f32 v{ch[c4]}, v{part[0]}, v{part[1]}, v{part[2]}")
        for k in range(3, 31, 2):
            for c4 in range(4):
                part = vals[c4 * 32:(c4 + 1) * 32]
                e(f"v_max3_f32 v{ch[c4]}, v{ch[c4]}, v{part[k]}, v{part[k+1]}")
        for c4 in range(4):
            part = vals[c4 * 32:(c4 + 1) * 32]
            e(f"v_max_f32 v{ch[c4]}, v{ch[c4]}, v{part[31]}")
        e(f"v_max3_f32 v{MX}, v{MX}, v{TM}, v{TM+1}")
        e(f"v_max_f32 v{MX}, v{MX}, v{TM+2}")
        e(f"v_mov_b32 v{TM}, v{MX}")
        e(f"v_permlane32_swap_b32 v{MX}, v{TM}")
        e(f"v_max_f32 v{MX}, v{MX}, v{TM}")
        self.stamp(21)
        order = [1, 2, 3, 4, 5, 6, 7, 8]
        for n, i in enumerate(order):
            Sb = S0 + 16 * i
            for r in range(16):
                e(f"v_sub_f32 v{Sb+r}, v{Sb+r}, v{MX}")
            for r in range(16):
                e(f"v_exp_f32 v{Sb+r}, v{Sb+r}")
            P = PP + 8 * (n & 1)
            if i < 8:
                for r in range(8):
                    e(f"v_cvt_pk_bf16_f32 v{P+r}, v{Sb+2*r}, v{Sb+2*r+1}")
            else:
                for r in range(16):
                    m = f"s[{MASK0+2*r}:{MASK0+2*r+1}]"
                    e(f"v_cndmask_b32 v{Sf+r}, v{Sb+r}, 0, {m}")
                    e(f"v_cndmask_b32 v{Sb+r}, 0, v{Sb+r}, {m}")
                for r in range(8):
                    e(f"v_cvt_pk_bf16_f32 v{P+r}, v{Sb+2*r}, v{Sb+2*r+1}")
            slot = n % 3
            b = KF + 8 * slot
            lk = None
            if i < 8:
                lk = e.label("PVSK")
                e(f"s_waitcnt lgkmcnt({lg.cnt((i,1))})")
                e(f"s_cmp_gt_i32 {NSK}, {i}")
                e(f"s_cbranch_scc1 {lk}")
            else:
                e(f"s_waitcnt lgkmcnt({lg.cnt((i,1))})")
            e(f"v_mfma_f32_32x32x16_bf16 {vr(OA,16)}, {vr(b)}, {vr(P)}, {vr(OA,16)}")
            e(f"v_mfma_f32_32x32x16_bf16 {vr(OA,16)}, {vr(b+4)}, {vr(P+4)}, {vr(OA,16)}")
            if lk: e(f"{lk}:")
            nn = n + 2
            if nn < len(order):
                e(f"v_add_u32 v{AV}, v{AV}, v{VST}")
                rd_v(nn % 3, order[nn])
            elif nn == len(order):
                e(f"v_lshlrev_b32 v{TM}, 3, v{VST}")
                e(f"v_sub_u32 v{AV}, v{AV}, v{TM}")
                rd_v(nn % 3, 0)
        P = PP
        for r in range(8):
            e(f"v_cvt_pk_bf16_f32 v{P+r}, v{Sf+2*r}, v{Sf+2*r+1}")
        b = KF + 8 * (len(order) % 3)
        lk = e.label("PVSK")
        e(f"s_waitcnt lgkmcnt(0)")
        e(f"s_cmp_gt_i32 {NSK}, 0")
        e(f"s_cbranch_scc1 {lk}")
        e(f"v_mfma_f32_32x32x16_bf16 {vr(OA,16)}, {vr(b)}, {vr(P)}, {vr(OA,16)}")
        e(f"v_mfma_f32_32x32x16_bf16 {vr(OA,16)}, {vr(b+4)}, {vr(P+4)}, {vr(OA,16)}")
        e(f"{lk}:")
        e(f"s_nop 7")
        e(f"s_nop 7")
        self.stamp(22)
        e(f"v_rcp_f32 v{TM}, v{OA+8}")
        for i in range(4):
            e(f"v_pk_mul_f32 v[{OA+2*i}:{OA+2*i+1}], v[{OA+2*i}:{OA+2*i+1}], v[{TM}:{TM+1}] op_sel_hi:[1,0]")
        for i in range(4):
            e(f"v_cvt_pk_bf16_f32 v{PP+i}, v{OA+2*i}, v{OA+2*i+1}")
        e(f"s_and_b32 {t0}, {S_W}, 3")
        e(f"s_lshl_b32 {t1}, {S_C}, 2")
        e(f"s_add_u32 {t1}, {t1}, {t0}")
        e(f"s_lshl_b32 {t1}, {t1}, 15")
        e(f"s_lshr_b32 {t2}, {S_W}, 2")
        e(f"s_lshl_b32 {t3}, {S_P}, 1")
        e(f"s_add_u32 {t3}, {t3}, {t2}")
        e(f"s_lshl_b32 {t3}, {t3}, 10")
        e(f"s_add_u32 {t1}, {t1}, {t3}")
        e(f"s_lshl_b32 {t3}, {S_LAY}, 21")
        e(f"s_add_u32 {t1}, {t1}, {t3}")
        e(f"s_add_u32 {t1}, {t1}, {WS_OF}")
        self.store_mode(f"buffer_store_dwordx4 {vr(PP)}, v1, {SRD_WS}, {t1} offen")
        e(f"s_lshl_b32 {t0}, {t0}, 1")
        e(f"s_add_u32 {t0}, {t0}, {t2}")
        e(f"s_lshl_b32 {t0}, {t0}, 7")
        e(f"s_lshl_b32 {t3}, {S_P}, 2")
        e(f"s_add_u32 {t0}, {t0}, {t3}")
        e(f"s_add_u32 {t0}, {t0}, {S_FLB}")
        e(f"s_add_u32 {t0}, {t0}, {WS_FLAGS + FL1}")
        e(f"s_waitcnt vmcnt(0)")
        self.flag_store(t0, TM)
        self.barrier("B_d")
        self.stamp(5)

    def tile64_addr(self, akeep, asend):
        e = self.e
        t0 = T[0]
        e(f"""
        v_lshrrev_b32 v16, 5, v0
        v_lshlrev_b32 v16, 2, v16
        v_and_b32 v17, 15, v0
        v_lshrrev_b32 v17, 2, v17
        v_add_u32 v16, v16, v17
        v_lshlrev_b32 v16, 7, v16
        v_lshrrev_b32 v17, 1, v17
        s_lshr_b32 {t0}, {S_W}, 1
        v_xor_b32 v17, {t0}, v17
        v_and_b32 v17, 1, v17
        v_lshlrev_b32 v17, 6, v17
        v_add_u32 v16, v16, v17
        v_lshrrev_b32 v17, 4, v0
        v_and_b32 v17, 1, v17
        v_lshlrev_b32 v17, 5, v17
        v_add_u32 v16, v16, v17
        v_and_b32 v17, 3, v0
        v_lshlrev_b32 v17, 3, v17
        v_add_u32 v16, v16, v17
        s_lshl_b32 {t0}, {t0}, 11
        v_add_u32 v{akeep}, {t0}, v16
        v_xor_b32 v{asend}, 64, v{akeep}
        """)
    def tg64(self, dst):
        e = self.e
        e(f"s_lshr_b32 {T[7]}, {S_P}, 3")
        e(f"s_lshl_b32 {T[7]}, {T[7]}, 1")
        e(f"s_and_b32 {dst}, {S_W}, 1")
        e(f"s_add_u32 {T[7]}, {T[7]}, {dst}")
        e(f"s_lshl_b32 {dst}, {S_C}, 2")
        e(f"s_add_u32 {dst}, {dst}, {T[7]}")
    def reduce_exchange(self, red, accK, accS, tmp):
        e = self.e
        t0 = T[0]
        return
    def epilogue64(self, accK, RX, red, final_ok):
        e = self.e
        for i in range(8):
            e(f"v_pk_add_f32 v[{accK+2*i}:{accK+2*i+1}], v[{accK+2*i}:{accK+2*i+1}], v[{RX+2*i}:{RX+2*i+1}]")
        for i in range(8):
            e(f"v_lshlrev_b32 v{RX+2*i}, 16, v{2+i}")
            e(f"v_and_b32 v{RX+2*i+1}, 0xffff0000, v{2+i}")
        for i in range(8):
            e(f"v_pk_add_f32 v[{accK+2*i}:{accK+2*i+1}], v[{accK+2*i}:{accK+2*i+1}], v[{RX+2*i}:{RX+2*i+1}]")
        for i in range(8):
            e(f"v_cvt_pk_bf16_f32 v{2+i}, v{accK+2*i}, v{accK+2*i+1}")
        e(f"v_pk_add_f32 v[{RX}:{RX+1}], v[{accK}:{accK+1}], v[{accK+2}:{accK+3}]")
        e(f"v_pk_mul_f32 v[{RX+2}:{RX+3}], v[{accK}:{accK+1}], v[{accK}:{accK+1}]")
        e(f"v_pk_fma_f32 v[{RX+2}:{RX+3}], v[{accK+2}:{accK+3}], v[{accK+2}:{accK+3}], v[{RX+2}:{RX+3}]")
        for i in range(2, 8):
            e(f"v_pk_add_f32 v[{RX}:{RX+1}], v[{RX}:{RX+1}], v[{accK+2*i}:{accK+2*i+1}]")
            e(f"v_pk_fma_f32 v[{RX+2}:{RX+3}], v[{accK+2*i}:{accK+2*i+1}], v[{accK+2*i}:{accK+2*i+1}], v[{RX+2}:{RX+3}]")
        e(f"v_add_f32 v16, v{RX}, v{RX+1}")
        e(f"v_add_f32 v17, v{RX+2}, v{RX+3}")
        e(f"v_mov_b32 v18, v16")
        e(f"v_mov_b32 v19, v17")
        e(f"v_permlane32_swap_b32 v16, v18")
        e(f"v_permlane32_swap_b32 v17, v19")
        e(f"v_add_f32 v16, v16, v18")
        e(f"v_add_f32 v17, v17, v19")
    def stats_store(self, tg, stbuf_sgpr):
        e = self.e
        t0, t1 = T[0], T[1]
        e(f"s_lshl_b32 {t0}, {tg}, 12")
        e(f"s_add_u32 {t0}, {t0}, {stbuf_sgpr}")
        e(f"s_and_b32 {t1}, {S_P}, 7")
        e(f"s_lshl_b32 {t1}, {t1}, 9")
        e(f"s_add_u32 {t0}, {t0}, {t1}")
        e(f"s_lshr_b32 {t1}, {S_W}, 1")
        e(f"s_lshl_b32 {t1}, {t1}, 3")
        e(f"s_add_u32 {t0}, {t0}, {t1}")
        e(f"s_mov_b32 exec_hi, 0")
        self.store_mode(f"buffer_store_dwordx2 v[16:17], v1, {SRD_WS}, {t0} offen")
        e(f"s_mov_b32 exec_hi, -1")
    def flag64(self, fl):
        e = self.e
        t0, t1 = T[0], T[1]
        e(f"s_lshl_b32 {t0}, {T[7]}, 7")
        e(f"s_and_b32 {t1}, {S_P}, 7")
        e(f"s_lshl_b32 {t1}, {t1}, 1")
        e(f"s_add_u32 {t0}, {t0}, {S_FLB}")
        e(f"s_lshl_b32 {t1}, {t1}, 2")
        e(f"s_add_u32 {t0}, {t0}, {t1}")
        e(f"s_lshr_b32 {t1}, {S_W}, 1")
        e(f"s_lshl_b32 {t1}, {t1}, 2")
        e(f"s_add_u32 {t0}, {t0}, {t1}")
        e(f"s_add_u32 {t0}, {t0}, {WS_FLAGS + fl}")
        e(f"s_waitcnt vmcnt(0)")
        self.flag_store(t0, 18)
    def exchange(self, red, accS, RX, bf, bg):
        e = self.e
        t0 = T[0]
        if bf: self.barrier(bf)
        e(f"s_and_b32 {t0}, {S_W}, 1")
        e(f"s_lshl_b32 {t0}, {t0}, 1")
        e(f"s_lshr_b32 {T[1]}, {S_W}, 1")
        e(f"s_add_u32 {t0}, {t0}, {T[1]}")
        e(f"s_lshl_b32 {t0}, {t0}, 12")
        e(f"s_add_u32 {t0}, {t0}, {red}")
        e(f"v_add_u32 v20, {t0}, v1")
        e(f"v_xor_b32 v21, 0x1000, v20")
        e(f"s_nop 7")
        e(f"s_nop 3")
        for q in range(4):
            e(f"ds_write_b128 v21, {vr(accS+4*q)} offset:{q*1024}")
        e(f"s_waitcnt lgkmcnt(0)")
        self.barrier(bg)
        for q in range(4):
            e(f"ds_read_b128 {vr(RX+4*q)}, v20 offset:{q*1024}")
        e(f"s_waitcnt lgkmcnt(0)")

    def wo_compute(self):
        e = self.e
        ACT = 128; accK, accS = 80, 96; RING = 48; AKP, ASN = 12, 13; RX = 112
        t0, t1, TG = T[0], T[1], T[6]
        self.tile64_addr(AKP, ASN)
        self.tg64(TG)
        e(f"s_lshl_b32 {t0}, {T[7]}, 1")
        e(f"s_lshr_b32 {t1}, {S_W}, 1")
        e(f"s_add_u32 {t0}, {t0}, {t1}")
        e(f"s_lshl_b32 {t0}, {t0}, 7")
        e(f"s_add_u32 {t0}, {t0}, {S_FLB}")
        e(f"s_add_u32 {t0}, {t0}, {WS_FLAGS + FL1}")
        self.poll(t0, 10, 16, "FL1")
        self.stamp(6)
        e(f"s_lshl_b32 {t0}, {TG}, 15")
        e(f"s_lshl_b32 {t1}, {S_LAY}, 21")
        e(f"s_add_u32 {t0}, {t0}, {t1}")
        e(f"s_lshr_b32 {t1}, {S_W}, 1")
        e(f"s_lshl_b32 {t1}, {t1}, 10")
        e(f"s_add_u32 {t0}, {t0}, {t1}")
        e(f"s_add_u32 {t0}, {t0}, {WS_OF}")
        SA = T[5]
        e(f"s_mov_b32 {SA}, {t0}")
        vq = Q(63)
        def ld(u):
            e(f"buffer_load_dwordx4 {vr(ACT+4*u)}, v1, {SRD_WS}, {SA} offen offset:{(u&1)*2048} sc1"); vq.issue(u)
            if u & 1: e(f"s_add_u32 {SA}, {SA}, 4096")
        NPRE = self.P.get('wo_pre', 12)
        for u in range(NPRE): ld(u)
        lg = Q(15)
        def rd(u):
            sl = RING + 8 * (u % 4)
            for t, a in ((0, AKP), (1, ASN)):
                e(f"ds_read_b64_tr_b16 v[{sl+4*t}:{sl+4*t+1}], v{a} offset:{u*4096}"); lg.issue()
                e(f"ds_read_b64_tr_b16 v[{sl+4*t+2}:{sl+4*t+3}], v{a} offset:{u*4096+1024}"); lg.issue((u, t))
        for u in range(3): rd(u)
        for u in range(16):
            sl = RING + 8 * (u % 4)
            e(f"s_waitcnt vmcnt({vq.cnt(u)}) lgkmcnt({lg.cnt((u,1))})")
            c = "0" if u == 0 else vr(accK, 16)
            e(f"v_mfma_f32_32x32x16_bf16 {vr(accK,16)}, {vr(sl)}, {vr(ACT+4*u)}, {c}")
            if u + 3 < 16: rd(u + 3)
            c = "0" if u == 0 else vr(accS, 16)
            e(f"v_mfma_f32_32x32x16_bf16 {vr(accS,16)}, {vr(sl+4)}, {vr(ACT+4*u)}, {c}")
            if u + NPRE < 16: ld(u + NPRE)
        self.stamp(7)
        self.exchange(RED_WO, accS, RX, "B_f", "B_g")
        self.epilogue64(accK, RX, RED_WO, False)
        e(f"""
        v_and_b32 v20, 15, v0
        v_lshlrev_b32 v20, 4, v20
        v_lshrrev_b32 v21, 4, v0
        v_and_b32 v21, 1, v21
        v_lshlrev_b32 v21, 14, v21
        v_add_u32 v20, v20, v21
        v_lshrrev_b32 v21, 5, v0
        v_lshlrev_b32 v21, 8, v21
        v_add_u32 v20, v20, v21
        s_lshl_b32 {t0}, {TG}, 15
        s_lshl_b32 {t1}, {S_LAY}, 21
        s_add_u32 {t0}, {t0}, {t1}
        s_and_b32 {t1}, {S_P}, 7
        s_lshl_b32 {t1}, {t1}, 11
        s_add_u32 {t0}, {t0}, {t1}
        s_lshr_b32 {t1}, {S_W}, 1
        s_lshl_b32 {t1}, {t1}, 10
        s_add_u32 {t0}, {t0}, {t1}
        s_add_u32 {t0}, {t0}, {WS_X1}
        """)
        self.store_mode([f"buffer_store_dwordx4 v[2:5], v20, {SRD_WS}, {t0} offen",
                         f"buffer_store_dwordx4 v[6:9], v20, {SRD_WS}, {t0} offen offset:512"])
        e(f"s_lshl_b32 {T[2]}, {S_LAY}, 19")
        e(f"s_add_u32 {T[2]}, {T[2]}, {WS_ST}")
        self.stats_store(TG, T[2])
        self.flag64(FL2)
        self.stamp(8)

    def w1_compute(self):
        e = self.e
        ACT = 128; ACC = 72; RING = 32; NR = 10
        A0, A1, A2 = 12, 13, 14
        t0, t1, TG = T[0], T[1], T[6]
        self.barrier("B_h0")
        e(f"""
        v_lshrrev_b32 v16, 4, v0
        v_and_b32 v17, 1, v16
        v_lshlrev_b32 v17, 2, v17
        v_lshrrev_b32 v16, 1, v16
        v_lshlrev_b32 v16, 4, v16
        v_add_u32 v16, v16, v17
        v_and_b32 v17, 15, v0
        v_lshrrev_b32 v17, 2, v17
        v_add_u32 v16, v16, v17
        v_mul_u32_u24 v16, 224, v16
        v_and_b32 v17, 3, v0
        v_lshlrev_b32 v17, 3, v17
        v_add_u32 v{A0}, v16, v17
        v_add_u32 v{A1}, 0x10000, v{A0}
        v_add_u32 v{A2}, 0x20000, v{A0}
        s_lshl_b32 {TG}, {S_C}, 2
        s_add_u32 {TG}, {TG}, {S_W}
        s_lshl_b32 {t0}, {S_W}, 7
        s_add_u32 {t0}, {t0}, {S_FLB}
        s_add_u32 {t0}, {t0}, {WS_FLAGS + FL2}
        """)
        self.poll(t0, 10, 16, "FL2")
        self.stamp(9)
        SA, SB = T[5], T[4]
        e(f"s_lshl_b32 {SA}, {TG}, 15")
        e(f"s_lshl_b32 {t1}, {S_LAY}, 21")
        e(f"s_add_u32 {SA}, {SA}, {t1}")
        e(f"s_add_u32 {SA}, {SA}, {WS_X1}")
        e(f"s_add_u32 {SB}, {SA}, 16384")
        vq = Q(63)
        def ld(kb):
            e(f"buffer_load_dwordx4 {vr(ACT+8*kb)}, v1, {SRD_WS}, {SA} offen offset:{(kb&3)*1024} sc1"); vq.issue()
            e(f"buffer_load_dwordx4 {vr(ACT+8*kb+4)}, v1, {SRD_WS}, {SB} offen offset:{(kb&3)*1024} sc1"); vq.issue(kb)
            if (kb & 3) == 3 and kb < 15:
                e(f"s_add_u32 {SA}, {SA}, 4096")
                e(f"s_add_u32 {SB}, {SB}, 4096")
        KPRE = self.P.get('w1_pre', 6)
        for kb in range(2): ld(kb)
        e(f"s_lshl_b32 {t0}, {TG}, 12")
        e(f"s_lshl_b32 {t1}, {S_LAY}, 19")
        e(f"s_add_u32 {t0}, {t0}, {t1}")
        e(f"s_add_u32 {t0}, {t0}, {WS_ST}")
        for u in range(4):
            e(f"buffer_load_dwordx4 {vr(16+4*u)}, v1, {SRD_WS}, {t0} offen offset:{u*1024} sc1"); vq.issue()
        for kb in range(2, KPRE): ld(kb)
        self.barrier("B_h")
        self.stamp(18)
        lg = Q(15)
        seq = [(kb, nt) for kb in range(16) for nt in range(7)]
        def rd(n):
            kb, nt = seq[n]
            sl = RING + 4 * (n % NR)
            for rdn in range(2):
                addr = W1_BASE(kb) + rdn * 8 * 224 + nt * 32
                if addr >= 131072: a, off = A2, addr - 131072
                elif addr >= 65536: a, off = A1, addr - 65536
                else: a, off = A0, addr
                e(f"ds_read_b64_tr_b16 v[{sl+2*rdn}:{sl+2*rdn+1}], v{a} offset:{off}"); lg.issue((n, rdn))
        PRE = 7
        for n in range(PRE): rd(n)
        for n, (kb, nt) in enumerate(seq):
            sl = RING + 4 * (n % NR)
            if nt == 0:
                e(f"s_waitcnt vmcnt({vq.cnt(kb)}) lgkmcnt({lg.cnt((n,1))})")
            else:
                e(f"s_waitcnt lgkmcnt({lg.cnt((n,1))})")
            for tt in range(2):
                acc = ACC + (nt * 2 + tt) * 4
                c = "0" if kb == 0 else vr(acc)
                e(f"v_mfma_f32_16x16x32_bf16 {vr(acc)}, {vr(sl)}, {vr(ACT+8*kb+4*tt)}, {c}")
                if tt == 0 and n + PRE < len(seq): rd(n + PRE)
            if nt == 1 and kb + KPRE < 16: ld(kb + KPRE)
            if nt == 6 and kb == self.P.get("pw_kb", 10): self.barrier("PW")
        self.barrier("B_i")
        self.stamp(10)
        XA = RING
        e(f"v_and_b32 v60, 15, v0")
        e(f"v_lshlrev_b32 v60, 3, v60")
        e(f"v_add_u32 v60, {L_XW1}, v60")
        for nt in range(7):
            e(f"ds_read_b64 v[{XA+4*nt}:{XA+4*nt+1}], v60 offset:{nt*128}")
            e(f"v_mov_b32 v{XA+4*nt+2}, 0")
            e(f"v_mov_b32 v{XA+4*nt+3}, 0")
        self.sum_partials(16, 16, 17)
        PM, PS, RS = 24, 25, 26
        self.stats_finalize(16, 17, 20, PM, PS, RS)
        e(f"v_and_b32 v{PS}, 0xffff, v{PS}")
        E0, E1 = 60, 64
        R0, R1 = 28, 30
        e(f"v_mov_b32 v{E0}, v{PM}")
        e(f"v_mov_b32 v{E1}, v{PM}")
        e(f"v_mov_b32 v{E0+1}, v{PS}")
        e(f"v_mov_b32 v{E1+1}, v{PS}")
        e(f"v_mov_b32 v{R0}, v{RS}")
        e(f"v_mov_b32 v{R1}, v{RS}")
        e(f"v_permlane16_swap_b32 v{E0}, v{E1}")
        e(f"v_permlane16_swap_b32 v{E0+1}, v{E1+1}")
        e(f"v_permlane16_swap_b32 v{R0}, v{R1}")
        e(f"v_cmp_gt_u32 vcc, 16, v0")
        for E in (E0, E1):
            e(f"v_cndmask_b32 v{E}, 0, v{E}, vcc")
            e(f"v_cndmask_b32 v{E+1}, 0, v{E+1}, vcc")
            e(f"v_mov_b32 v{E+2}, 0")
            e(f"v_mov_b32 v{E+3}, 0")
        e(f"s_waitcnt lgkmcnt(0)")
        for nt in range(7):
            for tt, E in ((0, E0), (1, E1)):
                acc = ACC + (nt * 2 + tt) * 4
                e(f"v_mfma_f32_16x16x32_bf16 {vr(acc)}, {vr(XA+4*nt)}, {vr(E)}, {vr(acc)}")
        e(f"""
        v_lshrrev_b32 v20, 4, v0
        v_and_b32 v20, 1, v20
        v_lshlrev_b32 v20, 9, v20
        v_lshrrev_b32 v21, 5, v0
        v_lshlrev_b32 v21, 8, v21
        v_add_u32 v20, v20, v21
        v_and_b32 v21, 15, v0
        v_lshlrev_b32 v21, 4, v21
        v_add_u32 v20, v20, v21
        s_mul_i32 {t0}, {TG}, 114688
        s_mul_i32 {t1}, {S_LAY}, {HF_L}
        s_add_u32 {t0}, {t0}, {t1}
        s_mul_i32 {t1}, {S_P}, 7168
        s_add_u32 {t0}, {t0}, {t1}
        s_add_u32 {t0}, {t0}, {WS_HF}
        """)
        OUT = 128
        stores = []
        for nt in range(7):
            for tt, R in ((0, R0), (1, R1)):
                acc = ACC + (nt * 2 + tt) * 4
                for r in range(4):
                    e(f"v_max_f32 v{acc+r}, 0, v{acc+r}")
                for i in range(2):
                    e(f"v_pk_mul_f32 v[{acc+2*i}:{acc+2*i+1}], v[{acc+2*i}:{acc+2*i+1}], v[{R}:{R+1}] op_sel_hi:[1,0]")
                for i in range(2):
                    e(f"v_pk_mul_f32 v[{acc+2*i}:{acc+2*i+1}], v[{acc+2*i}:{acc+2*i+1}], v[{acc+2*i}:{acc+2*i+1}]")
                for i in range(2):
                    e(f"v_cvt_pk_bf16_f32 v{OUT+4*nt+2*tt+i}, v{acc+2*i}, v{acc+2*i+1}")
            e(f"v_permlane32_swap_b32 v{OUT+4*nt}, v{OUT+4*nt+2}")
            e(f"v_permlane32_swap_b32 v{OUT+4*nt+1}, v{OUT+4*nt+3}")
        e(f"s_add_u32 {t1}, {t0}, 4096")
        st = []
        for nt in range(7):
            base, off = (t0, nt * 1024) if nt < 4 else (t1, (nt - 4) * 1024)
            st.append(f"buffer_store_dwordx4 {vr(OUT+4*nt)}, v20, {SRD_WS}, {base} offen offset:{off}")
        self.store_mode(st)
        e(f"s_lshl_b32 {t0}, {S_W}, 7")
        e(f"s_lshl_b32 {t1}, {S_P}, 2")
        e(f"s_add_u32 {t0}, {t0}, {t1}")
        e(f"s_add_u32 {t0}, {t0}, {S_FLB}")
        e(f"s_add_u32 {t0}, {t0}, {WS_FLAGS + FL3}")
        e(f"s_waitcnt vmcnt(0)")
        self.flag_store(t0, 18)
        self.stamp(11)

    def w2_compute(self):
        e = self.e
        ACT = 128; NA = 32; accK, accS = 80, 96; RING = 48; RX = 112
        AK = [12, 14, 22]; AS = [13, 15, 23]
        t0, t1, TG = T[0], T[1], T[6]
        self.tile64_addr(AK[0], AS[0])
        for i in (1, 2):
            e(f"v_add_u32 v{AK[i]}, {i*0x10000}, v{AK[0]}")
            e(f"v_add_u32 v{AS[i]}, {i*0x10000}, v{AS[0]}")
        self.tg64(TG)
        e(f"s_mov_b32 s36, s{S_B2[0]}")
        e(f"s_and_b32 s37, s{S_B2[1]}, 0xffff")
        e(f"s_mov_b32 s38, 1024")
        e(f"s_mov_b32 s39, 0x20000")
        e(f"s_and_b32 {t0}, {S_P}, 7")
        e(f"s_lshl_b32 {t0}, {t0}, 7")
        e(f"s_lshr_b32 {t1}, {S_W}, 1")
        e(f"s_lshl_b32 {t1}, {t1}, 6")
        e(f"s_add_u32 {t0}, {t0}, {t1}")
        e(f"v_lshrrev_b32 v16, 5, v0")
        e(f"v_lshlrev_b32 v16, 3, v16")
        for q in range(4):
            e(f"buffer_load_dwordx2 v[{RX+2*q}:{RX+2*q+1}], v16, {SRD_T}, {t0} offen offset:{16*q}")
        e(f"s_lshl_b32 {t0}, {T[7]}, 7")
        e(f"s_add_u32 {t0}, {t0}, {S_FLB}")
        e(f"s_add_u32 {t0}, {t0}, {WS_FLAGS + FL3}")
        self.poll(t0, 10, 16, "FL3")
        self.stamp(12)
        e(f"s_mul_i32 {t0}, {TG}, 114688")
        e(f"s_mul_i32 {t1}, {S_LAY}, {HF_L}")
        e(f"s_add_u32 {t0}, {t0}, {t1}")
        e(f"s_lshr_b32 {t1}, {S_W}, 1")
        e(f"s_lshl_b32 {t1}, {t1}, 10")
        e(f"s_add_u32 {t0}, {t0}, {t1}")
        SA = T[5]
        e(f"s_add_u32 {SA}, {t0}, {WS_HF}")
        vq = Q(63)
        def ld(u):
            e(f"buffer_load_dwordx4 {vr(ACT+4*(u%NA))}, v1, {SRD_WS}, {SA} offen offset:{(u&1)*2048} sc1"); vq.issue(u)
            if u & 1: e(f"s_add_u32 {SA}, {SA}, 4096")
        NPRE = self.P.get('w2_pre', 20)
        for u in range(NPRE): ld(u)
        for q in range(4):
            for i in range(2):
                e(f"v_lshlrev_b32 v{accK+4*q+2*i}, 16, v{RX+2*q+i}")
                e(f"v_and_b32 v{accK+4*q+2*i+1}, 0xffff0000, v{RX+2*q+i}")
        self.barrier("B_j")
        self.stamp(19)
        lg = Q(15)
        def rd(u):
            sl = RING + 8 * (u % 4)
            base = W2_SLOT(u) * 4096
            for t, AA in ((0, AK), (1, AS)):
                for rdn in range(2):
                    addr = base + rdn * 1024
                    a = AA[addr >> 16]; off = addr & 0xffff
                    e(f"ds_read_b64_tr_b16 v[{sl+4*t+2*rdn}:{sl+4*t+2*rdn+1}], v{a} offset:{off}"); lg.issue((u, t, rdn))
        for u in range(3): rd(u)
        for u in range(56):
            sl = RING + 8 * (u % 4)
            if u + 3 == 39: self.barrier("Y")
            e(f"s_waitcnt vmcnt({vq.cnt(u)}) lgkmcnt({lg.cnt((u,1,1))})")
            if u % 8 == 0: self.stamp(24 + u // 8)
            e(f"v_mfma_f32_32x32x16_bf16 {vr(accK,16)}, {vr(sl)}, {vr(ACT+4*(u%NA))}, {vr(accK,16)}")
            if u + 3 < 56: rd(u + 3)
            c = "0" if u == 0 else vr(accS, 16)
            e(f"v_mfma_f32_32x32x16_bf16 {vr(accS,16)}, {vr(sl+4)}, {vr(ACT+4*(u%NA))}, {c}")
            if u + NPRE < 56: ld(u + NPRE)
            if u == 16: self.barrier("X")
        self.stamp(13)
        self.exchange(RED_W2, accS, RX, None, "B_k")
        self.epilogue64(accK, RX, RED_W2, True)
        lf, ld_ = e.label("FINAL"), e.label("W2D")
        e(f"s_cmp_eq_u32 {S_LAY}, {self.nlayers-1}")
        e(f"s_cbranch_scc1 {lf}")
        e(f"""
        s_lshl_b32 {t0}, {TG}, 15
        s_and_b32 {t1}, {S_P}, 7
        s_lshl_b32 {t1}, {t1}, 12
        s_add_u32 {t0}, {t0}, {t1}
        s_lshr_b32 {t1}, {S_W}, 1
        s_lshl_b32 {t1}, {t1}, 11
        s_add_u32 {t0}, {t0}, {t1}
        s_add_u32 {t0}, {t0}, {WS_XF}
        """)
        self.store_mode([f"buffer_store_dwordx4 v[2:5], v1, {SRD_WS}, {t0} offen",
                         f"buffer_store_dwordx4 v[6:9], v1, {SRD_WS}, {t0} offen offset:1024"])
        e(f"s_mov_b32 {T[2]}, {WS_ST + 0x40000}")
        self.stats_store(TG, T[2])
        self.flag64(FL4)
        e(f"s_branch {ld_}")
        e(f"{lf}:")
        e(f"""
        v_and_b32 v20, 31, v0
        v_lshlrev_b32 v20, 10, v20
        v_lshrrev_b32 v21, 5, v0
        v_lshlrev_b32 v21, 3, v21
        v_add_u32 v20, v20, v21
        s_lshl_b32 {t0}, {TG}, 15
        s_and_b32 {t1}, {S_P}, 7
        s_lshl_b32 {t1}, {t1}, 7
        s_add_u32 {t0}, {t0}, {t1}
        s_lshr_b32 {t1}, {S_W}, 1
        s_lshl_b32 {t1}, {t1}, 6
        s_add_u32 {t0}, {t0}, {t1}
        """)
        for q in range(4):
            e(f"buffer_store_dwordx2 v[{2+2*q}:{3+2*q}], v20, {SRD_OUT}, {t0} offen offset:{16*q}")
        e(f"{ld_}:")
        self.stamp(14)

    def helper(self):
        e = self.e
        VQ, VO, VW1 = 2, 3, 4
        W1V = [4, 5, 6, 7, 8, 9, 22]
        t0, t1, t2, t3 = T[0], T[1], T[2], T[3]
        e("L_HELPER:")
        e(f"s_sub_u32 {S_H}, {S_W}, 4")
        e(f"""
        v_lshrrev_b32 v{VQ}, 2, v0
        v_mul_u32_u24 v{VQ}, 3072, v{VQ}
        v_and_b32 v12, 3, v0
        v_lshlrev_b32 v12, 4, v12
        v_add_u32 v{VQ}, v{VQ}, v12
        v_lshrrev_b32 v{VO}, 3, v0
        v_lshlrev_b32 v{VO}, 10, v{VO}
        v_lshrrev_b32 v12, 4, v0
        v_and_b32 v12, 1, v12
        v_lshlrev_b32 v12, 2, v12
        v_and_b32 v13, 7, v0
        v_xor_b32 v12, v12, v13
        v_lshlrev_b32 v12, 4, v12
        v_add_u32 v{VO}, v{VO}, v12
        """)
        for i, r in enumerate(W1V):
            e(f"v_add_u32 v12, {64*i}, v0")
            e(f"v_mul_u32_u24 v13, 4682, v12")
            e(f"v_lshrrev_b32 v13, 16, v13            ; row = G/14")
            e(f"v_mul_u32_u24 v14, 14, v13")
            e(f"v_sub_u32 v14, v12, v14               ; q")
            e(f"v_mul_u32_u24 v13, 3584, v13")
            e(f"v_lshlrev_b32 v14, 4, v14")
            e(f"v_add_u32 v{r}, v13, v14")
        e(f"v_lshlrev_b32 v24, 7, v0")
        li = e.label("HINIT")
        e(f"s_cmp_lg_u32 {S_H}, 3")
        e(f"s_cbranch_scc1 {li}")
        e(f"""
        v_mov_b32 v12, 0
        v_mov_b32 v13, 0
        v_mov_b32 v14, 0
        v_mov_b32 v15, 0
        s_lshl_b32 {t0}, {S_C}, 4
        s_add_u32 {t0}, {t0}, {S_P}
        s_lshl_b32 {t1}, {t0}, 10
        s_add_u32 {t1}, {t1}, {WS_KVF}
        buffer_store_dwordx4 v[12:15], v1, {SRD_WS}, {t1} offen sc1
        s_lshl_b32 {t1}, {S_P}, 8
        s_add_u32 {t1}, {t1}, {S_FLB}
        s_add_u32 {t1}, {t1}, {WS_FLAGS}
        s_mov_b32 exec_lo, 0xffff
        s_mov_b32 exec_hi, 0
        buffer_store_dwordx4 v[12:15], v1, {SRD_WS}, {t1} offen sc1
        s_mov_b64 exec, -1
        v_mov_b32 v16, 0x3f80
        v_mov_b32 v17, 0
        v_mov_b32 v18, 0
        v_mov_b32 v19, 0
        v_lshlrev_b32 v20, 7, v0
        v_add_u32 v20, {L_CONST}, v20
        s_mov_b64 exec, 15
        ds_write_b128 v20, v[16:19]
        s_mov_b64 exec, -1
        s_getreg_b32 {t2}, hwreg(HW_REG_XCC_ID)
        s_and_b32 {t2}, {t2}, 15
        s_or_b32 {t2}, {t2}, 0x80
        s_mov_b32 s36, s{S_DBG[0]}
        s_and_b32 s37, s{S_DBG[1]}, 0xffff
        s_mov_b32 s38, 256
        s_mov_b32 s39, 0x20000
        v_mov_b32 v16, {t2}
        s_waitcnt vmcnt(0) lgkmcnt(0)
        s_mov_b64 exec, 1
        buffer_store_byte v16, off, {SRD_T}, {t0} sc1
        s_mov_b64 exec, -1
        """)
        e(f"{li}:")
        e("L_HLAYER:")
        self.stamp(0)
        l3, l2, lq_end = e.label("H3Q"), e.label("H2Q"), e.label("HQE")
        e(f"s_cmp_eq_u32 {S_H}, 3")
        e(f"s_cbranch_scc1 {l3}")
        e(f"s_cmp_eq_u32 {S_H}, 2")
        e(f"s_cbranch_scc1 {l2}")
        def wq_issue():
            e(f"s_add_u32 {t0}, {S_H}, 1")
            e(f"s_lshl_b32 {t0}, {t0}, 10")
            e(f"s_cmp_eq_u32 {S_H}, 2")
            e(f"s_cselect_b32 {t0}, 0, {t0}")
            e(f"s_lshl_b32 {t1}, {S_P}, 6")
            e(f"s_add_u32 {t0}, {t0}, {t1}")
            e(f"s_lshl_b32 {t1}, {S_H}, 15")
            self.dma_loop(SRD_WQKV, VQ, t0, 16 * 3072, t1, 1024, 32)
        def cs_setup():
            e(f"""
            v_and_b32 v16, 15, v0
            v_lshrrev_b32 v16, 2, v16
            v_lshlrev_b32 v16, 6, v16
            v_lshrrev_b32 v17, 4, v0
            v_and_b32 v17, 1, v17
            v_lshlrev_b32 v17, 5, v17
            v_add_u32 v16, v16, v17
            v_and_b32 v17, 3, v0
            v_lshlrev_b32 v17, 3, v17
            v_add_u32 v16, v16, v17
            v_lshrrev_b32 v17, 5, v0
            v_lshlrev_b32 v17, 9, v17
            v_add_u32 v16, v16, v17
            s_lshl_b32 {t1}, {S_H}, 15
            v_add_u32 v12, {t1}, v16
            """)
            for r in range(48, 52): e(f"v_mov_b32 v{r}, {S_ONES}")
            for r in range(32, 48): e(f"v_mov_b32 v{r}, 0")
        def cs_chunk(c):
            for hf in range(2):
                for s in range(8 * c + 4 * hf, 8 * c + 4 * hf + 4):
                    b = 52 + 4 * (s % 4)
                    e(f"ds_read_b64_tr_b16 v[{b}:{b+1}], v12 offset:{s*1024}")
                    e(f"ds_read_b64_tr_b16 v[{b+2}:{b+3}], v12 offset:{s*1024+256}")
                for s in range(4):
                    b = 52 + 4 * s
                    e(f"s_waitcnt lgkmcnt({6-2*s})")
                    e(f"v_mfma_f32_32x32x16_bf16 v[32:47], v[48:51], v[{b}:{b+3}], v[32:47]")
        def cs_finish():
            e(f"s_nop 7"); e(f"s_nop 3")
            e(f"v_sub_f32 v16, 0, v32")
            e(f"v_cvt_pk_bf16_f32 v17, v16, v16")
            e(f"v_lshlrev_b32 v18, 16, v17")
            e(f"v_sub_f32 v18, v16, v18")
            e(f"v_cvt_pk_bf16_f32 v17, v16, v18")
            e(f"v_and_b32 v19, 31, v0")
            e(f"v_lshlrev_b32 v19, 2, v19")
            e(f"s_lshl_b32 {t1}, {S_H}, 7")
            e(f"s_add_u32 {t1}, {t1}, {L_XWQ}")
            e(f"v_add_u32 v19, {t1}, v19")
            e(f"ds_write_b32 v19, v17")
            e(f"s_waitcnt lgkmcnt(0)")
        wq_issue()
        self.stamp(8)
        lsk = e.label("HCS")
        e(f"s_cmp_eq_u32 {S_LAY}, 0")
        e(f"s_cbranch_scc0 {lsk}")
        cs_setup()
        for c in range(4):
            e(f"s_waitcnt vmcnt({24-8*c})")
            self.stamp(9+c)
            self.barrier(f"Q{c}")
            cs_chunk(c)
        cs_finish()
        e(f"s_branch {lsk}_j")
        e(f"{lsk}:")
        for c in range(4):
            e(f"s_waitcnt vmcnt({24-8*c})")
            self.stamp(9+c)
            self.barrier(f"Q{c}")
        e(f"{lsk}_j:")
        lpf = e.label("PFW")
        if self.P.get("pf_w1", 2) == 1:
            e(f"s_cmp_eq_u32 {S_H}, 0")
            e(f"s_cbranch_scc0 {lpf}")
            self.l2_prefetch(SRD_W1, 512 * 1792 * 2)
            e(f"s_branch {lpf}_j")
            e(f"{lpf}:")
            self.l2_prefetch(SRD_WO, 512 * 512 * 2)
            e(f"{lpf}_j:")
        self.barrier("Q4")
        self.barrier("Q5")
        e(f"s_branch {lq_end}")
        e(f"{l2}:")
        wq_issue()
        self.stamp(8)
        self.barrier("Q0"); self.barrier("Q1"); self.barrier("Q2"); self.barrier("Q3")
        lsk2 = e.label("HCS2")
        e(f"s_cmp_eq_u32 {S_LAY}, 0")
        e(f"s_cbranch_scc0 {lsk2}")
        cs_setup()
        for c in range(3):
            e(f"s_waitcnt vmcnt({24-8*c})")
            cs_chunk(c)
        e(f"s_waitcnt vmcnt(0)")
        self.barrier("Q4")
        cs_chunk(3)
        cs_finish()
        self.barrier("Q5")
        e(f"s_branch {lq_end}")
        e(f"{lsk2}:")
        e(f"s_waitcnt vmcnt(0)")
        self.stamp(12)
        self.barrier("Q4")
        self.barrier("Q5")
        e(f"s_branch {lq_end}")
        e(f"{l3}:")
        for c in range(6): self.barrier(f"Q{c}")
        lr = e.label("HRDY")
        e(f"s_cmp_eq_u32 {S_LAY}, 0")
        e(f"s_cbranch_scc0 {lr}")
        self.ready_check()
        e(f"{lr}:")
        self.halo()
        self.barrier("B_c")
        self.check_stop("qkv")
        e(f"s_branch L_ATTN")
        e(f"{lq_end}:")
        l2b, lwd = e.label("H2B"), e.label("HWD")
        e(f"s_cmp_eq_u32 {S_H}, 2")
        e(f"s_cbranch_scc1 {l2b}")
        e(f"s_and_b32 {t0}, {S_P}, 7")
        e(f"s_lshl_b32 {t0}, {t0}, 7")
        e(f"s_lshl_b32 {t1}, {S_H}, 18")
        e(f"s_add_u32 {t0}, {t0}, {t1}")
        e(f"s_lshl_b32 {t1}, {S_H}, 15")
        self.dma_loop(SRD_WO, VO, t0, 8192, t1, 1024, 32)
        e(f"s_branch {lwd}")
        e(f"{l2b}:")
        for kb in range(4): self.w1_block_static(kb, W1V)
        e(f"{lwd}:")
        self.barrier("B_c")
        lpa = e.label("PFA")
        e(f"s_cmp_eq_u32 {S_H}, 0")
        e(f"s_cbranch_scc0 {lpa}")
        if self.P.get("pf_w1", 2) == 2: self.l2_prefetch(SRD_W1, 512 * 1792 * 2)
        if self.P.get("pf_w2", 3) == 2: self.l2_prefetch(SRD_W2, 1792 * 512 * 2)
        e(f"{lpa}:")
        self.check_stop("qkv")
        e(f"s_branch L_ATTN")
        e("L_H_POSTATTN:")
        self.w1_blocks_dyn(4, 2, W1V)
        lp2 = e.label("PF2")
        e(f"s_cmp_eq_u32 {S_H}, 0")
        e(f"s_cbranch_scc0 {lp2}")
        if self.P.get("pf_w2", 3) == 1: self.l2_prefetch(SRD_W2, 1792 * 512 * 2)
        e(f"{lp2}:")
        self.stamp(16)
        self.barrier("B_f")
        self.barrier("B_g")
        self.check_stop("wo")
        self.stamp(17)
        self.w1_blocks_dyn(12, 1, W1V)
        self.stamp(18)
        e(f"s_waitcnt vmcnt(0)")
        self.stamp(19)
        self.barrier("B_h0")
        lc = e.label("HC1")
        e(f"s_cmp_eq_u32 {S_LAY}, 0")
        e(f"s_cbranch_scc0 {lc}")
        self.colsum_w1()
        e(f"{lc}:")
        self.barrier("B_h")
        self.stamp(24)
        if self.P.get("w2a_late", 1) == 0: self.w2_dma(0, 9, VO)
        self.barrier("PW")
        if self.P.get("w2a_late", 1) == 1: self.w2_dma(0, 9, VO)
        lp4 = e.label("PF4")
        e(f"s_cmp_eq_u32 {S_H}, 0")
        e(f"s_cbranch_scc0 {lp4}")
        if self.P.get("pf_w2", 3) == 3: self.l2_prefetch(SRD_W2, 1792 * 512 * 2)
        e(f"{lp4}:")
        self.stamp(25)
        self.barrier("B_i")
        self.stamp(26)
        self.check_stop("w1")
        self.w2_dma(9, 32, VO)
        self.w2_dma(32, 39, VO)
        t0, t2 = T[0], T[2]
        e(f"s_and_b32 {t0}, {S_P}, 7")
        e(f"s_lshl_b32 {t0}, {t0}, 7")
        e(f"s_lshl_b32 {t2}, {S_H}, 13")
        e(f"s_add_u32 {t0}, {t0}, {t2}")
        e(f"s_add_u32 {t0}, {t0}, {39*32*1024}")
        for i in range(17):
            e(f"buffer_load_dwordx4 {vr(64+4*i)}, v{VO}, {SRD_W2}, {t0} offen")
            if i < 16: e(f"s_add_u32 {t0}, {t0}, {32*1024}")
        self.stamp(27)
        e(f"s_waitcnt vmcnt(17)")
        self.stamp(28)
        self.barrier("B_j")
        e(f"s_waitcnt vmcnt(0)")
        lp3 = e.label("PF3")
        e(f"s_cmp_eq_u32 {S_H}, 0")
        e(f"s_cbranch_scc0 {lp3}")
        e(f"s_cmp_lt_u32 {S_LAY}, {self.nlayers-1}")
        e(f"s_cbranch_scc0 {lp3}")
        if self.P.get("pf_qkv", 1) == 1: self.l2_prefetch(SRD_WQKV, 512 * 1536 * 2)
        e(f"{lp3}:")
        e(f"s_lshl_b32 {t0}, {S_H}, 10")
        e(f"v_add_u32 v12, {t0}, v1")
        e(f"v_add_u32 v13, 0x10000, v12")
        self.barrier("X")
        self.stamp(30)
        for i in range(17):
            addr = W2_SLOT(39 + i) * 4096
            a, off = (12, addr) if addr < 65536 else (13, addr - 65536)
            e(f"ds_write_b128 v{a}, {vr(64+4*i)} offset:{off}")
        e(f"s_waitcnt lgkmcnt(0)")
        lp5 = e.label("PF5")
        e(f"s_cmp_eq_u32 {S_H}, 0")
        e(f"s_cbranch_scc0 {lp5}")
        e(f"s_cmp_lt_u32 {S_LAY}, {self.nlayers-1}")
        e(f"s_cbranch_scc0 {lp5}")
        if self.P.get("pf_qkv", 1) == 2: self.l2_prefetch(SRD_WQKV, 512 * 1536 * 2)
        e(f"{lp5}:")
        self.stamp(13)
        self.barrier("Y")
        self.barrier("B_k")
        self.check_stop("w2")
        e(f"s_add_u32 {S_LAY}, {S_LAY}, 1")
        e(f"s_add_u32 {S_EPOCH}, {S_EPOCH}, 1")
        e(f"s_cmp_lt_u32 {S_LAY}, {self.nlayers}")
        e(f"s_cbranch_scc1 L_HLAYER")
        e(f"s_branch L_END")

    def l2_prefetch(self, srd, total):
        e = self.e
        if not self.P.get("pf", 1): return
        size = total // 32
        t0 = T[0]
        e(f"s_lshr_b32 {t0}, s2, 3")
        e(f"s_mul_i32 {t0}, {t0}, {size}")
        for i in range(size // 8192):
            e(f"buffer_load_dword v23, v24, {srd}, {t0} offen")
            if i + 1 < size // 8192: e(f"s_add_u32 {t0}, {t0}, 8192")
    def w1_block_static(self, kb, W1V):
        e = self.e
        t0 = T[0]
        e(f"s_mul_i32 {t0}, {S_P}, 224")
        e(f"s_add_u32 {t0}, {t0}, {kb*32*3584}")
        for i, r in enumerate(W1V):
            e(f"s_mov_b32 m0, {W1_BASE(kb) + i*1024}")
            e(f"buffer_load_dwordx4 v{r}, {SRD_W1}, {t0} offen lds")
    def w1_blocks_dyn(self, kb0, per, W1V):
        e = self.e
        t0, t1 = T[0], T[1]
        e(f"s_mul_i32 {t1}, {S_H}, {per}")
        e(f"s_mul_i32 {t0}, {t1}, {32*3584}")
        e(f"s_mul_i32 {t1}, {t1}, 7168")
        e(f"s_add_u32 {t1}, {t1}, {W1_BASE(kb0)}")
        e(f"s_mul_i32 {T[2]}, {S_P}, 224")
        e(f"s_add_u32 {t0}, {t0}, {T[2]}")
        e(f"s_add_u32 {t0}, {t0}, {kb0*32*3584}")
        for b in range(per):
            for i, r in enumerate(W1V):
                e(f"s_add_u32 m0, {t1}, {b*7168 + i*1024}")
                e(f"buffer_load_dwordx4 v{r}, {SRD_W1}, {t0} offen lds")
            if b + 1 < per: e(f"s_add_u32 {t0}, {t0}, {32*3584}")
    def w2_dma(self, u0, u1, VO):
        e = self.e
        t0, t1, t2 = T[0], T[1], T[2]
        assert all(W2_SLOT(u) == W2_SLOT(u0) + (u - u0) for u in range(u0, u1))
        e(f"s_and_b32 {t0}, {S_P}, 7")
        e(f"s_lshl_b32 {t0}, {t0}, 7")
        e(f"s_lshl_b32 {t2}, {S_H}, 13")
        e(f"s_add_u32 {t0}, {t0}, {t2}")
        e(f"s_add_u32 {t0}, {t0}, {u0*32*1024}")
        e(f"s_lshl_b32 {t1}, {S_H}, 10")
        e(f"s_add_u32 {t1}, {t1}, {W2_SLOT(u0)*4096}")
        self.dma_loop(SRD_W2, VO, t0, 32 * 1024, t1, 4096, u1 - u0)

    def ready_check(self):
        e = self.e
        t0, t1, t2 = T[0], T[1], T[2]
        e(f"""
        s_lshl_b32 {t0}, {S_C}, 4
        s_add_u32 {t1}, {t0}, {S_P}
        v_mov_b32 v12, {t1}
        v_add_u32 v13, {t0}, v0
        v_cmp_gt_u32 vcc, 16, v0
        v_cndmask_b32 v12, v12, v13, vcc
        s_sub_u32 {t2}, {t1}, 16
        s_cmp_ge_u32 {S_C}, 1
        s_cselect_b32 {t2}, {t2}, {t1}
        v_mov_b32 v13, {t2}
        v_cmp_eq_u32 vcc, 16, v0
        v_cndmask_b32 v12, v12, v13, vcc
        s_sub_u32 {t2}, {t1}, 32
        s_cmp_ge_u32 {S_C}, 2
        s_cselect_b32 {t2}, {t2}, {t1}
        v_mov_b32 v13, {t2}
        v_cmp_eq_u32 vcc, 17, v0
        v_cndmask_b32 v12, v12, v13, vcc
        s_mov_b32 s36, s{S_DBG[0]}
        s_and_b32 s37, s{S_DBG[1]}, 0xffff
        s_mov_b32 s38, 256
        s_mov_b32 s39, 0x20000
        s_mov_b32 {T[19]}, 0
        """)
        l0 = e.label("RDY")
        e(f"{l0}:")
        e(f"buffer_load_ubyte v13, v12, {SRD_T}, 0 offen sc1")
        e(f"s_add_u32 {T[19]}, {T[19]}, 1")
        e(f"s_cmp_gt_u32 {T[19]}, {POLL_LIMIT}")
        e(f"s_cbranch_scc1 L_BAIL")
        e(f"s_waitcnt vmcnt(0)")
        e(f"v_cmp_gt_u32 vcc, 0x80, v13")
        e(f"s_cbranch_vccnz {l0}")
        e(f"s_getreg_b32 {t2}, hwreg(HW_REG_XCC_ID)")
        e(f"s_and_b32 {t2}, {t2}, 15")
        e(f"s_or_b32 {t2}, {t2}, 0x80")
        e(f"v_cmp_eq_u32 vcc, {t2}, v13")
        e(f"s_nop 4")
        e(f"s_and_b32 {t0}, vcc_lo, 0xffff")
        e(f"s_cmp_eq_u32 {t0}, 0xffff")
        e(f"s_cselect_b32 {t0}, 1, 0")
        e(f"v_mov_b32 v13, {t0}")
        e(f"v_mov_b32 v14, {L_MODE}")
        e(f"ds_write_b32 v14, v13")
        e(f"s_waitcnt lgkmcnt(0)")

    def halo(self):
        e = self.e
        t0, t1, t2, t3 = T[0], T[1], T[2], T[3]
        ld = e.label("HALOD")
        e(f"s_cmp_eq_u32 {S_C}, 0")
        e(f"s_cbranch_scc1 {ld}")
        e(f"""
        v_lshrrev_b32 v12, 2, v0
        v_and_b32 v12, 1, v12
        s_cmp_ge_u32 {S_C}, 2
        s_cselect_b32 {t0}, 1, 0
        v_and_b32 v12, {t0}, v12
        s_sub_u32 {t1}, {S_C}, 1
        v_sub_u32 v12, {t1}, v12
        v_lshlrev_b32 v12, 4, v12
        v_add_u32 v12, {S_P}, v12
        v_lshlrev_b32 v12, 2, v12
        v_and_b32 v13, 3, v0
        v_add_u32 v12, v12, v13
        v_lshlrev_b32 v12, 8, v12
        s_mov_b32 {t0}, {WS_KVF}
        """)
        self.poll(t0, 12, 13, "KVF")
        self.stamp(1)
        e(f"s_cmp_ge_u32 {S_C}, 2")
        e(f"s_cselect_b32 {t3}, 0, 4")
        e(f"s_lshl_b32 {t0}, {S_C}, 2")
        e(f"s_add_u32 {t0}, {t0}, {t3}")
        e(f"s_sub_u32 {t0}, {t0}, 8")
        e(f"s_lshl_b32 {t0}, {t0}, 16")
        e(f"s_lshl_b32 {t1}, {S_P}, 12")
        e(f"s_add_u32 {t0}, {t0}, {t1}")
        e(f"s_lshl_b32 {t1}, {S_LAY}, 22")
        e(f"s_add_u32 {t0}, {t0}, {t1}")
        e(f"s_add_u32 {t0}, {t0}, {WS_KV}")
        e(f"s_lshl_b32 {t1}, {t3}, 10")
        lp = e.label("HALO")
        e(f"{lp}:")
        for hd in range(2):
            for kv in range(2):
                e(f"s_add_u32 m0, {t1}, {(L_VBUF if kv else L_KBUF) + hd*12288}")
                e(f"s_add_u32 {t2}, {t0}, {hd*2048 + kv*1024}")
                e(f"buffer_load_dwordx4 v1, {SRD_WS}, {t2} offen sc1 lds")
        e(f"s_add_u32 {t0}, {t0}, 65536")
        e(f"s_add_u32 {t1}, {t1}, 1024")
        e(f"s_add_u32 {t3}, {t3}, 1")
        e(f"s_cmp_lt_u32 {t3}, 8")
        e(f"s_cbranch_scc1 {lp}")
        e(f"s_waitcnt vmcnt(0)")
        e(f"{ld}:")

    def colsum_w1(self):
        e = self.e
        t0, t1 = T[0], T[1]
        e(f"""
        v_lshrrev_b32 v16, 4, v0
        v_and_b32 v17, 1, v16
        v_lshlrev_b32 v17, 2, v17
        v_lshrrev_b32 v16, 1, v16
        v_lshlrev_b32 v16, 4, v16
        v_add_u32 v16, v16, v17
        v_and_b32 v17, 15, v0
        v_lshrrev_b32 v17, 2, v17
        v_add_u32 v16, v16, v17
        v_mul_u32_u24 v16, 224, v16
        v_and_b32 v17, 3, v0
        v_lshlrev_b32 v17, 3, v17
        v_add_u32 v16, v16, v17
        s_mov_b32 s36, s{S_B1[0]}
        s_and_b32 s37, s{S_B1[1]}, 0xffff
        s_mov_b32 s38, 3584
        s_mov_b32 s39, 0x20000
        s_mov_b32 {T[4]}, {S_H}                 ; nt
        """)
        for r in range(48, 52): e(f"v_mov_b32 v{r}, {S_ONES}")
        lp, le = e.label("CS1"), e.label("CS1E")
        e(f"{lp}:")
        e(f"s_lshl_b32 {t0}, {T[4]}, 5")
        e(f"v_add_u32 v12, {t0}, v16")
        e(f"v_add_u32 v13, 0x10000, v12")
        e(f"v_add_u32 v14, 0x20000, v12")
        e(f"s_mul_i32 {t1}, {S_P}, 224")
        e(f"s_add_u32 {t1}, {t1}, {t0}")
        e(f"v_and_b32 v17, 15, v0")
        e(f"v_lshlrev_b32 v17, 1, v17")
        e(f"buffer_load_ushort v33, v17, {SRD_T}, {t1} offen")
        for r in range(36, 40): e(f"v_mov_b32 v{r}, 0")
        for grp in range(4):
            for k in range(4):
                kb = grp * 4 + k
                b = 52 + 4 * k
                for rdn in range(2):
                    addr = W1_BASE(kb) + rdn * 8 * 224
                    a = (12, 13, 14)[addr >> 16]; off = addr & 0xffff
                    e(f"ds_read_b64_tr_b16 v[{b+2*rdn}:{b+2*rdn+1}], v{a} offset:{off}")
            for k in range(4):
                b = 52 + 4 * k
                e(f"s_waitcnt lgkmcnt({6-2*k})")
                e(f"v_mfma_f32_16x16x32_bf16 v[36:39], v[48:51], v[{b}:{b+3}], v[36:39]")
        e(f"s_nop 7")
        e(f"v_sub_f32 v18, 0, v36")
        e(f"v_cvt_pk_bf16_f32 v19, v18, v18")
        e(f"v_lshlrev_b32 v20, 16, v19")
        e(f"v_sub_f32 v20, v18, v20")
        e(f"v_cvt_pk_bf16_f32 v32, v18, v20")
        e(f"v_lshlrev_b32 v17, 2, v17               ; (l&15)*8")
        e(f"s_lshl_b32 {t0}, {T[4]}, 7")
        e(f"s_add_u32 {t0}, {t0}, {L_XW1}")
        e(f"v_add_u32 v17, {t0}, v17")
        e(f"s_waitcnt vmcnt(0)")
        e(f"ds_write_b64 v17, v[32:33]")
        e(f"s_add_u32 {T[4]}, {T[4]}, 4")
        e(f"s_cmp_lt_u32 {T[4]}, 7")
        e(f"s_cbranch_scc1 {lp}")
        e(f"s_waitcnt lgkmcnt(0)")

    def finish(self):
        e = self.e
        for kind, outl, ACT in self.deferred:
            for lo, lb, st in outl:
                e(f"{lo}:")
                for i in range(4):
                    e(f"v_dot2c_f32_bf16 v{16+(i&1)}, {S_ONES}, v{ACT+4*st+i}")
                    e(f"v_dot2c_f32_bf16 v{18+(i&1)}, v{ACT+4*st+i}, v{ACT+4*st+i}")
                e(f"s_branch {lb}")
        e("L_BAIL:")
        e("s_mov_b64 exec, -1")
        e("L_END:")
        if self.P.get("calib", 0):
            e(f"s_cmp_ge_u32 s2, 256")
            e(f"s_cbranch_scc1 L_CAL2")
            e(f"s_memtime s[64:65]")
            e(f"s_waitcnt lgkmcnt(0)")
            e("L_CAL:")
            e(f"s_memtime s[66:67]")
            e(f"s_waitcnt lgkmcnt(0)")
            e(f"s_sub_u32 s68, s66, s64")
            e(f"s_cmp_lt_u32 s68, {self.P['calib']}")
            e(f"s_cbranch_scc1 L_CAL")
            e("L_CAL2:")
        if self.stamps:
            e(f"s_cmp_ge_u32 s2, 256")
            e(f"s_cbranch_scc1 L_END2")
            e(f"s_lshl_b32 {T[0]}, s2, 3")
            e(f"s_add_u32 {T[0]}, {T[0]}, {S_W}")
            e(f"s_lshl_b32 {T[0]}, {T[0]}, 8")
            e(f"s_add_u32 {T[0]}, {T[0]}, {WS_STAMP}")
            e(f"v_lshlrev_b32 v12, 2, v0")
            e(f"s_memrealtime s[98:99]")
            e(f"s_waitcnt lgkmcnt(0)")
            e(f"v_writelane_b32 v11, s98, 63")
            e(f"buffer_store_dword v11, v12, {SRD_WS}, {T[0]} offen")
            if self.P.get("dbgdump", 0):
                e(f"s_cmp_lg_u32 s2, {self.P.get('dbgwg', 0)}")
                e(f"s_cbranch_scc1 L_END2")
                e(f"s_cmp_lg_u32 {S_W}, 0")
                e(f"s_cbranch_scc1 L_END2")
                sel = [0, 15, 16, 2, 4, 5, 8, 11, 14, 32+4, 32+5, 32+8, 32+11, 32+14, 31, 63]
                for i, l in enumerate(sel):
                    e(f"v_readlane_b32 s{64+i}, v11, {l}")
                e(f"s_nop 4")
                for i in range(16):
                    e(f"v_writelane_b32 v13, s{64+i}, {i}")
                e(f"s_mov_b32 s36, s{S_DBG[0]}")
                e(f"s_and_b32 s37, s{S_DBG[1]}, 0xffff")
                e(f"s_mov_b32 s38, 256")
                e(f"s_mov_b32 s39, 0x20000")
                e(f"s_mov_b64 exec, 0xffff")
                e(f"buffer_store_dword v13, v12, {SRD_T}, 0 offen sc1")
            e("L_END2:")
        e("s_endpgm")

    def build(self):
        e = self.e
        hdr = f"""; Persistent fused 2-layer transformer block (sliding-window attention + squared-relu MLP), gfx950
; @launch grid=(256,1,1) block=(512,1,1) lds={LDS_TOTAL}
.amdgcn_target "amdgcn-amd-amdhsa--gfx950"
.text
.globl {KNAME}
.p2align 8
.type {KNAME},@function
{KNAME}:
"""
        self.prologue()
        self.compute()
        self.helper()
        self.finish()
        tail = f"""
.section .rodata,"a"
.p2align 6
.amdhsa_kernel {KNAME}
  .amdhsa_next_free_vgpr 256
  .amdhsa_next_free_sgpr 102
  .amdhsa_accum_offset 256
  .amdhsa_group_segment_fixed_size 0
  .amdhsa_kernarg_size 88
  .amdhsa_user_sgpr_count 2
  .amdhsa_user_sgpr_kernarg_segment_ptr 1
  .amdhsa_system_sgpr_workgroup_id_x 1
.end_amdhsa_kernel
"""
        return hdr + e.text() + tail

if __name__ == "__main__":
    import argparse
    ap = argparse.ArgumentParser()
    ap.add_argument("-o", default="k.s")
    ap.add_argument("--stop", default=None)
    ap.add_argument("--stamps", action="store_true")
    ap.add_argument("--slow", action="store_true")
    ap.add_argument("-P", action="append", default=[])
    a = ap.parse_args()
    stop = None
    if a.stop:
        n, l = a.stop.split(":"); stop = (n, int(l))
    params = {kv.split("=")[0]: int(kv.split("=")[1]) for kv in a.P}
    g = Gen(stop=stop, stamps=a.stamps, force_slow=a.slow, params=params)
    txt = g.build()
    open(a.o, "w").write(txt)
    print("instructions:", g.e.nins, "nop states added:", g.e.nops_added, "bytes of text:", len(txt))
```

```python
import sys
from emit import Emit

KNAME = "interleave_layers__sliding_block__dense_activation_squared_relu__prompt_kernel"

L_WQ = [0, 32768, 65536]
L_KBUF, L_VBUF, L_QBUF = 98304, 122880, 147456
def W1_BASE(kb):
    if kb < 4: return 65536 + 7168 * kb
    if kb < 12: return 98304 + 7168 * (kb - 4)
    return 7168 * (kb - 12)
def W2_SLOT(u):
    if u < 9: return 7 + u
    if u < 32: return u + 7
    if u < 39: return u - 32
    if u < 48: return 7 + (u - 39)
    return 16 + (u - 48)
RED_WO, RED_W2 = 32768, 106496
PERS = 159744
L_CONST = PERS
L_XWQ = PERS + 512
L_XW1 = PERS + 1024
L_MODE = PERS + 2048
LDS_TOTAL = 163840

WS_FLAGS = 0x0
WS_KVF = 0x10000
WS_ST = 0x80000
WS_STAMP = 0x200000
WS_XF = 0x400000
WS_X1 = 0x600000
WS_OF = 0xA00000
WS_KV = 0xE00000
WS_HF = 0x1600000
HF_L = 0x700000
FL1, FL2, FL3, FL4 = 0, 1024, 1536, 2048

S_LAY, S_C, S_P, S_W, S_FAST = "s3", "s4", "s5", "s6", "s7"
SRD_X, SRD_WQKV, SRD_WO, SRD_W1, SRD_W2, SRD_WS, SRD_OUT, SRD_T = (
    "s[8:11]", "s[12:15]", "s[16:19]", "s[20:23]", "s[24:27]", "s[28:31]", "s[32:35]", "s[36:39]")
S_B2, S_B1, S_DBG = (40, 41), (42, 43), (44, 45)
S_EPOCH = "s46"
S_FLB = "s47"
MASK0 = 48
T = [f"s{i}" for i in range(80, 100)]
S_ONES = "s100"
S_H = "s101"

POLL_LIMIT = 100000

class Q:
    def __init__(self, maxn):
        self.n = 0; self.tags = {}; self.maxn = maxn
    def issue(self, tag=None):
        self.n += 1
        if tag is not None: self.tags[tag] = self.n
    def cnt(self, tag):
        return min(self.n - self.tags[tag], self.maxn)
    def reset(self):
        self.n = 0; self.tags = {}

def vr(a, n=4):
    return f"v[{a}:{a+n-1}]"

class Gen:
    def __init__(self, stop=None, stamps=False, force_slow=False, nlayers=2, params=None):
        self.e = Emit()
        self.stop = stop
        self.stamps = stamps
        self.force_slow = force_slow
        self.nlayers = nlayers
        self.nstamp = 0
        self.deferred = []
        self.P = params or {}
    def stamp(self, idx):
        if not self.stamps: return
        e = self.e
        e(f"s_memtime s[98:99]")
        e(f"s_lshl_b32 s97, {S_LAY}, 5")
        e(f"s_add_u32 m0, s97, {idx}")
        e(f"s_waitcnt lgkmcnt(0)")
        e(f"v_writelane_b32 v11, s98, m0")
    def srd(self, dst, lo, hi, size):
        e = self.e
        d = int(dst[2:dst.index(":")])
        e(f"s_mov_b32 s{d}, s{lo}")
        e(f"s_and_b32 s{d+1}, s{hi}, 0xffff")
        e(f"s_mov_b32 s{d+2}, {size}")
        e(f"s_mov_b32 s{d+3}, 0x20000")
    def barrier(self, name=""):
        self.e(f"s_barrier ; {name}")
    def poll(self, s_addr, voff, vtmp, nm):
        e = self.e
        l0, l1 = e.label("POLL"), e.label("POLLOK")
        cnt = T[19]
        e(f"s_mov_b32 {cnt}, 0")
        e(f"{l0}:")
        e(f"buffer_load_dword v{vtmp}, v{voff}, {SRD_WS}, {s_addr} offen sc1")
        e(f"s_add_u32 {cnt}, {cnt}, 1")
        e(f"s_cmp_gt_u32 {cnt}, {POLL_LIMIT}")
        e(f"s_cbranch_scc1 L_BAIL")
        e(f"s_waitcnt vmcnt(0)")
        e(f"v_cmp_gt_u32 vcc, {S_EPOCH}, v{vtmp}")
        e(f"s_cbranch_vccnz {l0}")
        e(f"{l1}:")
    def store_mode(self, text):
        e = self.e
        if isinstance(text, str): text = [text]
        if self.force_slow:
            for t in text: e(t + " sc1")
            return
        ls, ld = e.label("SLOW"), e.label("SDONE")
        e(f"s_cmp_eq_u32 {S_FAST}, 0")
        e(f"s_cbranch_scc1 {ls}")
        for t in text: e(t)
        e(f"s_branch {ld}")
        e(f"{ls}:")
        for t in text: e(t + " sc1")
        e(f"{ld}:")
    def flag_store(self, s_addr, vt, always_sc1=False):
        e = self.e
        e(f"v_mov_b32 v{vt}, {S_EPOCH}")
        e(f"s_mov_b64 exec, 1")
        t = f"buffer_store_dword v{vt}, off, {SRD_WS}, {s_addr}"
        if always_sc1: e(t + " sc1")
        else: self.store_mode(t)
        e(f"s_mov_b64 exec, -1")
    def dma_loop(self, srd, voff, s_soff, soff_stride, s_lds, lds_stride, count, flags=""):
        e = self.e
        if count <= 0: return
        lp = e.label("DMA")
        c = T[18]
        e(f"s_mov_b32 {c}, {count}")
        e(f"{lp}:")
        e(f"s_mov_b32 m0, {s_lds}")
        e(f"s_add_u32 {s_lds}, {s_lds}, {lds_stride}")
        e(f"buffer_load_dwordx4 v{voff}, {srd}, {s_soff} offen {flags} lds")
        e(f"s_add_u32 {s_soff}, {s_soff}, {soff_stride}")
        e(f"s_sub_u32 {c}, {c}, 1")
        e(f"s_cmp_lg_u32 {c}, 0")
        e(f"s_cbranch_scc1 {lp}")
    def check_stop(self, name, lay=None):
        if self.stop is None or self.stop[0] != name: return
        e = self.e
        e(f"s_cmp_eq_u32 {S_LAY}, {self.stop[1]}")
        e(f"s_cbranch_scc1 L_END")

    def prologue(self):
        e = self.e
        e(f"""
        s_cmp_ge_u32 s2, 256
        s_cbranch_scc1 L_END
        {"s_memrealtime s[0:1]" if False else ""}
        s_load_dwordx16 s[64:79], s[0:1], 0
        s_load_dwordx4 s[80:83], s[0:1], 64
        s_load_dwordx2 s[84:85], s[0:1], 80
        v_lshrrev_b32 v1, 6, v0
        v_and_b32 v0, 63, v0
        v_readfirstlane_b32 {S_W}, v1
        s_and_b32 {S_C}, s2, 7
        s_lshl_b32 {S_C}, {S_C}, 1
        s_lshr_b32 {S_P}, s2, 3
        s_lshr_b32 s46, {S_P}, 4
        s_add_u32 {S_C}, {S_C}, s46
        s_and_b32 {S_P}, {S_P}, 15
        s_mov_b32 {S_LAY}, 0
        s_mov_b32 {S_EPOCH}, 1
        s_mov_b32 {S_FAST}, 0
        s_lshl_b32 {S_FLB}, {S_C}, 12
        s_mov_b32 {S_ONES}, 0x3f803f80
        v_lshlrev_b32 v1, 4, v0
        v_and_b32 v10, 15, v0
        v_lshlrev_b32 v10, 2, v10
        v_mov_b32 v11, 0
        s_waitcnt lgkmcnt(0)
        """)
        if self.P.get("calibrt", 0):
            e("s_memrealtime s[0:1]")
            e("s_waitcnt lgkmcnt(0)")
        self.srd(SRD_X, 64, 65, 2048 * 512 * 2)
        self.srd(SRD_WQKV, 66, 67, 512 * 1536 * 2)
        self.srd(SRD_WO, 68, 69, 512 * 512 * 2)
        self.srd(SRD_W1, 72, 73, 512 * 1792 * 2)
        self.srd(SRD_W2, 76, 77, 1792 * 512 * 2)
        self.srd(SRD_WS, 84, 85, 0x10000000)
        self.srd(SRD_OUT, 80, 81, 2048 * 512 * 2)
        e(f"""
        s_mov_b32 s{S_B2[0]}, s78
        s_mov_b32 s{S_B2[1]}, s79
        s_mov_b32 s{S_B1[0]}, s74
        s_mov_b32 s{S_B1[1]}, s75
        s_mov_b32 s{S_DBG[0]}, s82
        s_mov_b32 s{S_DBG[1]}, s83
        """)
        e(f"""
        v_and_b32 v2, 31, v0
        v_lshrrev_b32 v3, 5, v0
        v_lshlrev_b32 v3, 2, v3
        v_sub_u32 v2, v2, v3
        """)
        for r in range(16):
            k = (r & 3) + 8 * (r >> 2)
            e(f"v_cmp_le_i32 s[{MASK0+2*r}:{MASK0+2*r+1}], {k}, v2")
        e(f"s_cmp_ge_u32 {S_W}, 4")
        e(f"s_cbranch_scc1 L_HELPER")

    def stats_finalize(self, vS, vQ, t0, out_pm, out_ps, out_rstd):
        e = self.e
        a, b, c_, d = t0, t0 + 1, t0 + 2, t0 + 3
        e(f"v_mov_b32 v{a}, v{vS}")
        e(f"v_mov_b32 v{b}, v{vQ}")
        e(f"v_permlane32_swap_b32 v{vS}, v{a}")
        e(f"v_permlane32_swap_b32 v{vQ}, v{b}")
        e(f"v_add_f32 v{vS}, v{vS}, v{a}")
        e(f"v_add_f32 v{vQ}, v{vQ}, v{b}")
        e(f"v_mul_f32 v{vS}, 0x3b000000, v{vS}")
        e(f"v_mul_f32 v{vQ}, 0x3b000000, v{vQ}")
        e(f"v_fma_f32 v{vQ}, -v{vS}, v{vS}, v{vQ}")
        e(f"v_max_f32 v{vQ}, 0, v{vQ}")
        e(f"v_cvt_pk_bf16_f32 v{out_pm}, v{vS}, v{vS}")
        e(f"v_cvt_pk_bf16_f32 v{a}, v{vQ}, v{vQ}")
        e(f"v_lshlrev_b32 v{a}, 16, v{a}")
        e(f"v_add_f32 v{a}, 0x3727c5ac, v{a}")
        e(f"v_cvt_pk_bf16_f32 v{a}, v{a}, v{a}")
        e(f"v_lshlrev_b32 v{a}, 16, v{a}")
        e(f"v_sqrt_f32 v{a}, v{a}")
        e(f"v_cvt_pk_bf16_f32 v{out_ps}, v{a}, v{a}")
        e(f"v_lshlrev_b32 v{a}, 16, v{out_ps}")
        e(f"v_rcp_f32 v{out_rstd}, v{a}")

    def sum_partials(self, base, vS, vQ):
        e = self.e
        b = base
        e(f"v_pk_add_f32 v[{b}:{b+1}], v[{b}:{b+1}], v[{b+2}:{b+3}]")
        e(f"v_pk_add_f32 v[{b+4}:{b+5}], v[{b+4}:{b+5}], v[{b+6}:{b+7}]")
        e(f"v_pk_add_f32 v[{b+8}:{b+9}], v[{b+8}:{b+9}], v[{b+10}:{b+11}]")
        e(f"v_pk_add_f32 v[{b+12}:{b+13}], v[{b+12}:{b+13}], v[{b+14}:{b+15}]")
        e(f"v_pk_add_f32 v[{b}:{b+1}], v[{b}:{b+1}], v[{b+4}:{b+5}]")
        e(f"v_pk_add_f32 v[{b+8}:{b+9}], v[{b+8}:{b+9}], v[{b+12}:{b+13}]")
        e(f"v_pk_add_f32 v[{b}:{b+1}], v[{b}:{b+1}], v[{b+8}:{b+9}]")
        assert vS == b and vQ == b + 1

    def compute(self):
        e = self.e
        t0, t1, t2 = T[0], T[1], T[2]
        e(f"""
        s_lshr_b32 {t0}, {S_P}, 3
        s_lshl_b32 {t0}, {t0}, 6
        s_and_b32 {t1}, {S_W}, 1
        s_lshl_b32 {t1}, {t1}, 5
        s_add_u32 {t0}, {t0}, {t1}
        s_lshl_b32 {t1}, {S_C}, 7
        s_add_u32 {t0}, {t0}, {t1}
        s_lshl_b32 {t0}, {t0}, 10
        s_and_b32 {t1}, {S_P}, 7
        s_lshl_b32 {t1}, {t1}, 7            ; 64j*2
        s_add_u32 {t0}, {t0}, {t1}
        s_lshr_b32 {t1}, {S_W}, 1
        s_lshl_b32 {t1}, {t1}, 6            ; 32kh*2
        s_add_u32 {t0}, {t0}, {t1}
        v_and_b32 v12, 31, v0
        v_lshlrev_b32 v12, 10, v12
        v_lshrrev_b32 v13, 5, v0
        v_lshlrev_b32 v13, 3, v13
        v_add_u32 v12, v12, v13
        """)
        for q in range(4):
            e(f"buffer_load_dwordx2 v[{2+2*q}:{3+2*q}], v12, {SRD_X}, {t0} offen offset:{16*q}")
        if self.stamps:
            e(f"s_memrealtime s[98:99]")
            e(f"s_waitcnt lgkmcnt(0)")
            e(f"v_writelane_b32 v11, s98, 31")
        e("L_CLAYER:")
        self.stamp(0)
        self.qkv_compute()
        self.check_stop("qkv")
        e("L_ATTN:")
        self.attention(helper=False)
        self.check_stop("attn")
        e(f"s_cmp_ge_u32 {S_W}, 4")
        e(f"s_cbranch_scc1 L_H_POSTATTN")
        self.wo_compute()
        self.check_stop("wo")
        self.w1_compute()
        self.check_stop("w1")
        self.w2_compute()
        self.check_stop("w2")
        e(f"s_add_u32 {S_LAY}, {S_LAY}, 1")
        e(f"s_add_u32 {S_EPOCH}, {S_EPOCH}, 1")
        e(f"s_cmp_lt_u32 {S_LAY}, {self.nlayers}")
        e(f"s_cbranch_scc1 L_CLAYER")
        e(f"s_branch L_END")

    def qkv_compute(self):
        e = self.e
        ACT = 128; accK, accV, accQ = 80, 96, 112; RING = 48
        A1, A2, A1Q, A2Q = 12, 13, 14, 15
        t0, t1, t2, t3 = T[0], T[1], T[2], T[3]
        TG = T[6]
        NPRE = self.P.get('qkv_pre', 16)
        e(f"""
        v_and_b32 v16, 15, v0
        v_lshrrev_b32 v16, 2, v16
        v_lshlrev_b32 v16, 6, v16
        v_lshrrev_b32 v17, 4, v0
        v_and_b32 v17, 1, v17
        v_lshlrev_b32 v17, 5, v17
        v_add_u32 v16, v16, v17
        v_and_b32 v17, 3, v0
        v_lshlrev_b32 v17, 3, v17
        v_add_u32 v16, v16, v17
        v_lshrrev_b32 v17, 5, v0
        s_movk_i32 {t2}, 256
        s_movk_i32 {t3}, 512
        s_cmp_eq_u32 {S_LAY}, 0
        s_cselect_b32 {t0}, {t3}, {t2}
        s_cselect_b32 {t1}, {t2}, {t3}
        v_mul_lo_u32 v17, v17, {t0}
        v_add_u32 v{A1}, v16, v17
        v_add_u32 v{A2}, {t1}, v{A1}
        v_add_u32 v{A1Q}, 0x10000, v{A1}
        v_add_u32 v{A2Q}, 0x10000, v{A2}
        v_and_b32 v44, 31, v0
        v_lshlrev_b32 v44, 2, v44
        v_add_u32 v44, {L_XWQ}, v44
        """)
        lx, ld = e.label("QX"), e.label("QLD")
        e(f"s_lshl_b32 {TG}, {S_C}, 2")
        e(f"s_add_u32 {TG}, {TG}, {S_W}          ; tg")
        e(f"s_cmp_eq_u32 {S_LAY}, 0")
        e(f"s_cbranch_scc1 {lx}")
        e(f"s_lshl_b32 {t0}, {S_W}, 7")
        e(f"s_add_u32 {t0}, {t0}, {S_FLB}")
        e(f"s_add_u32 {t0}, {t0}, {WS_FLAGS + FL4}")
        e(f"s_sub_u32 {S_EPOCH}, {S_EPOCH}, 1")
        self.poll(t0, 10, 16, "FL4")
        e(f"s_add_u32 {S_EPOCH}, {S_EPOCH}, 1")
        self.stamp(1)
        SA = T[5]
        e(f"s_lshl_b32 {SA}, {TG}, 15")
        e(f"s_add_u32 {SA}, {SA}, {WS_XF}")
        vq = Q(63)
        def ld_act(s):
            e(f"buffer_load_dwordx4 {vr(ACT+4*s)}, v1, {SRD_WS}, {SA} offen offset:{(s&3)*1024} sc1"); vq.issue(s)
            if (s & 3) == 3 and s < 31:
                e(f"s_add_u32 {SA}, {SA}, 4096")
        for s in range(4): ld_act(s)
        e(f"s_lshl_b32 {t0}, {TG}, 12")
        e(f"s_add_u32 {t0}, {t0}, {WS_ST + 0x40000}")
        for u in range(4):
            e(f"buffer_load_dwordx4 {vr(16+4*u)}, v1, {SRD_WS}, {t0} offen offset:{u*1024} sc1"); vq.issue(("st", u))
        for s in range(4, NPRE): ld_act(s)
        e(f"s_mov_b64 vcc, 0")
        e(f"s_branch {ld}")
        e(f"{lx}:")
        STG = L_KBUF
        e(f"""
        v_lshrrev_b32 v16, 3, v0
        v_lshlrev_b32 v17, 10, v16
        v_and_b32 v18, 7, v0
        v_lshlrev_b32 v19, 4, v18
        v_add_u32 v20, v17, v19
        s_lshl_b32 {t0}, {TG}, 15
        s_add_u32 {t1}, {t0}, 8192
        s_add_u32 {t2}, {t0}, 16384
        s_add_u32 {t3}, {t0}, 24576
        """)
        for ch in range(8):
            for rb, sr in enumerate((t0, t1, t2, t3)):
                e(f"buffer_load_dwordx4 {vr(ACT+16*ch+4*rb)}, v20, {SRD_X}, {sr} offen offset:{128*ch}")
        e(f"""
        v_lshrrev_b32 v17, 4, v0
        v_xor_b32 v17, v17, v18
        v_lshlrev_b32 v17, 4, v17
        v_lshlrev_b32 v16, 7, v16
        v_add_u32 v16, v16, v17
        s_lshl_b32 {t0}, {S_W}, 12
        s_add_u32 {t0}, {t0}, {STG}
        v_add_u32 v21, {t0}, v16
        v_xor_b32 v22, 64, v21
        v_and_b32 v16, 31, v0
        v_lshrrev_b32 v17, 1, v16
        v_and_b32 v17, 7, v17
        v_lshrrev_b32 v18, 5, v0
        v_xor_b32 v17, v17, v18
        v_lshlrev_b32 v17, 4, v17
        v_lshlrev_b32 v16, 7, v16
        v_add_u32 v16, v16, v17
        v_add_u32 v23, {t0}, v16
        v_xor_b32 v24, 32, v23
        v_xor_b32 v25, 64, v23
        v_xor_b32 v26, 96, v23
        """)
        for ch in range(8):
            e(f"s_waitcnt vmcnt({28-4*ch})")
            for rb in range(4):
                e(f"ds_write_b128 v{21+(rb&1)}, {vr(ACT+16*ch+4*rb)} offset:{rb*1024}")
            for sp in range(4):
                e(f"ds_read_b128 {vr(ACT+16*ch+4*sp)}, v{23+sp}")
        for r in range(16, 20):
            e(f"v_mov_b32 v{r}, 0")
        e(f"s_waitcnt lgkmcnt(0)")
        e(f"s_mov_b64 vcc, -1")
        e(f"{ld}:")
        self.stamp(15)
        lg = Q(15)
        def rd_kv(s):
            sl = RING + 8 * (s % 4)
            for t, off in ((0, 0), (1, 32768)):
                e(f"ds_read_b64_tr_b16 v[{sl+4*t}:{sl+4*t+1}], v{A1} offset:{off + s*1024}"); lg.issue()
                e(f"ds_read_b64_tr_b16 v[{sl+4*t+2}:{sl+4*t+3}], v{A2} offset:{off + s*1024}"); lg.issue((s, t))
        PM, PS, RSTD = 28, 29, 30
        outl = []
        self.barrier("Q0")
        self.stamp(16)
        for s in range(3): rd_kv(s)
        for s in range(32):
            sl = RING + 8 * (s % 4)
            if s + 3 < 32 and (s + 3) % 8 == 0:
                self.barrier(f"Q{(s+3)//8}")
            e(f"s_waitcnt vmcnt({vq.cnt(s)}) lgkmcnt({lg.cnt((s,1))})")
            c = "0" if s == 0 else vr(accK, 16)
            e(f"v_mfma_f32_32x32x16_bf16 {vr(accK,16)}, {vr(sl)}, {vr(ACT+4*s)}, {c}")
            if s + 3 < 32: rd_kv(s + 3)
            c = "0" if s == 0 else vr(accV, 16)
            e(f"v_mfma_f32_32x32x16_bf16 {vr(accV,16)}, {vr(sl+4)}, {vr(ACT+4*s)}, {c}")
            lo, lb = e.label("DOT"), e.label("DOTB")
            e(f"s_cbranch_vccnz {lo}")
            if s + NPRE < 32: ld_act(s + NPRE)
            e(f"{lb}:")
            outl.append((lo, lb, s))
        self.barrier("Q4")
        self.stamp(2)
        lg.reset()
        def rd_q(s):
            sl = RING + 4 * (s % 8)
            e(f"ds_read_b64_tr_b16 v[{sl}:{sl+1}], v{A1Q} offset:{s*1024}"); lg.issue()
            e(f"ds_read_b64_tr_b16 v[{sl+2}:{sl+3}], v{A2Q} offset:{s*1024}"); lg.issue(("q", s))
        XA, XB, EB = 32, 36, 40
        e(f"ds_read_b32 v{XA}, v44"); lg.issue("xk")
        e(f"ds_read_b32 v{XB}, v44 offset:128"); lg.issue("xv")
        for s in range(5): rd_q(s)
        l0, l1 = e.label("ST0"), e.label("ST1")
        e(f"s_cmp_eq_u32 {S_LAY}, 0")
        e(f"s_cbranch_scc1 {l0}")
        self.sum_partials(16, 16, 17)
        e(f"s_branch {l1}")
        e(f"{l0}:")
        e(f"s_nop 3")
        e(f"v_add_f32 v16, v16, v17")
        e(f"v_add_f32 v17, v18, v19")
        e(f"{l1}:")
        self.stats_finalize(16, 17, 20, PM, PS, RSTD)
        for r in (XA+1, XA+2, XA+3, XB+1, XB+2, XB+3, EB+1, EB+2, EB+3):
            e(f"v_mov_b32 v{r}, 0")
        e(f"v_cmp_gt_u32 vcc, 32, v0")
        e(f"v_cndmask_b32 v{EB}, 0, v{PM}, vcc")
        e(f"s_waitcnt lgkmcnt({lg.cnt('xv')})")
        e(f"v_mfma_f32_32x32x16_bf16 {vr(accK,16)}, {vr(XA)}, {vr(EB)}, {vr(accK,16)}")
        e(f"v_mfma_f32_32x32x16_bf16 {vr(accV,16)}, {vr(XB)}, {vr(EB)}, {vr(accV,16)}")
        e(f"s_lshl_b32 {t0}, {S_W}, 10")
        e(f"s_add_u32 {t0}, {t0}, {L_KBUF + 8*1024}")
        e(f"v_add_u32 v45, {t0}, v1")
        e(f"s_lshl_b32 {t0}, {TG}, 16")
        e(f"s_lshl_b32 {t1}, {S_P}, 12")
        e(f"s_add_u32 {t0}, {t0}, {t1}")
        e(f"s_lshl_b32 {t1}, {S_LAY}, 22")
        e(f"s_add_u32 {t0}, {t0}, {t1}")
        e(f"s_add_u32 {t0}, {t0}, {WS_KV}")
        PK = 68
        for kv, acc, lbuf in ((0, accK, 0), (1, accV, L_VBUF - L_KBUF)):
            for i in range(8):
                e(f"v_pk_mul_f32 v[{acc+2*i}:{acc+2*i+1}], v[{acc+2*i}:{acc+2*i+1}], v[{RSTD}:{RSTD+1}] op_sel_hi:[1,0]")
            for i in range(8):
                e(f"v_cvt_pk_bf16_f32 v{PK+i}, v{acc+2*i}, v{acc+2*i+1}")
            for hd in range(2):
                e(f"buffer_store_dwordx4 {vr(PK+4*hd)}, v1, {SRD_WS}, {t0} offen offset:{hd*2048 + kv*1024} sc1")
                e(f"ds_write_b128 v45, {vr(PK+4*hd)} offset:{lbuf + hd*12288}"); lg.issue()
        self.stamp(17)
        e(f"s_lshl_b32 {t0}, {S_C}, 4")
        e(f"s_add_u32 {t0}, {t0}, {S_P}")
        e(f"s_lshl_b32 {t0}, {t0}, 2")
        e(f"s_add_u32 {t0}, {t0}, {S_W}")
        e(f"s_lshl_b32 {t0}, {t0}, 8")
        e(f"s_add_u32 {t0}, {t0}, {WS_KVF}")
        for s in range(5, 7): rd_q(s)
        for s in range(32):
            sl = RING + 4 * (s % 8)
            e(f"s_waitcnt lgkmcnt({lg.cnt(('q', s))})")
            c = "0" if s == 0 else vr(accQ, 16)
            e(f"v_mfma_f32_32x32x16_bf16 {vr(accQ,16)}, {vr(sl)}, {vr(ACT+4*s)}, {c}")
            if s + 7 < 32: rd_q(s + 7)
            if s == 27:
                e(f"s_waitcnt vmcnt(0)")
                self.flag_store(t0, 22, always_sc1=True)
        self.barrier("Q5")
        self.stamp(3)
        e(f"ds_read_b32 v{XA}, v44 offset:256")
        e(f"v_mul_f32 v{RSTD}, 0x3eb8aa3b, v{RSTD}")
        e(f"s_lshl_b32 {t0}, {S_W}, 10")
        e(f"s_add_u32 {t0}, {t0}, {L_QBUF}")
        e(f"v_add_u32 v45, {t0}, v1")
        e(f"s_waitcnt lgkmcnt(0)")
        e(f"v_mfma_f32_32x32x16_bf16 {vr(accQ,16)}, {vr(XA)}, {vr(EB)}, {vr(accQ,16)}")
        for i in range(8):
            e(f"v_pk_mul_f32 v[{accQ+2*i}:{accQ+2*i+1}], v[{accQ+2*i}:{accQ+2*i+1}], v[{RSTD}:{RSTD+1}] op_sel_hi:[1,0]")
        for i in range(8):
            e(f"v_cvt_pk_bf16_f32 v{PK+i}, v{accQ+2*i}, v{accQ+2*i+1}")
        for hd in range(2):
            e(f"ds_write_b128 v45, {vr(PK+4*hd)} offset:{hd*4096}")
        e(f"s_waitcnt lgkmcnt(0)")
        self.barrier("B_c")
        self.stamp(4)
        self.deferred.append(("qkvdot", outl, ACT))

    def attention(self, helper):
        e = self.e
        S0 = 64
        KF = 208
        QF = 244
        OA = 32
        PP = 48
        AK, AV, VST, MX, TM = 12, 13, 14, 15, 16
        t0, t1, t2, t3 = T[0], T[1], T[2], T[3]
        NSK = T[4]
        e(f"v_mov_b32 v16, {L_MODE}")
        e(f"ds_read_b32 v17, v16")
        e(f"s_and_b32 {t0}, {S_W}, 3")
        e(f"s_lshr_b32 {t1}, {S_W}, 2")
        e(f"s_mul_i32 {t2}, {t1}, 12288")
        e(f"s_lshl_b32 {t3}, {t0}, 10")
        e(f"s_add_u32 {t2}, {t2}, {t3}               ; hd*12288 + w*1024")
        e(f"s_add_u32 {t3}, {t2}, {L_KBUF}")
        e(f"v_add_u32 v{AK}, {t3}, v1")
        e(f"s_lshl_b32 {t1}, {t1}, 12")
        e(f"s_lshl_b32 {t3}, {t0}, 10")
        e(f"s_add_u32 {t1}, {t1}, {t3}")
        e(f"s_add_u32 {t1}, {t1}, {L_QBUF}")
        e(f"v_add_u32 v18, {t1}, v1")
        e(f"ds_read_b128 {vr(QF)}, v18")
        e(f"s_lshl_b32 {t3}, {S_C}, 2")
        e(f"s_add_u32 {t3}, {t3}, {t0}")
        e(f"s_sub_i32 {NSK}, 8, {t3}")
        e(f"s_max_i32 {NSK}, {NSK}, 0")
        for i in range(9):
            e(f"ds_read_b128 {vr(KF+4*i)}, v{AK} offset:{i*1024}")
        e(f"""
        v_and_b32 v18, 1, v0
        v_lshlrev_b32 v18, 9, v18
        v_lshrrev_b32 v19, 5, v0
        v_lshlrev_b32 v19, 2, v19
        v_and_b32 v20, 15, v0
        v_lshrrev_b32 v20, 2, v20
        v_add_u32 v19, v19, v20
        v_lshlrev_b32 v19, 4, v19
        v_add_u32 v18, v18, v19
        v_lshrrev_b32 v19, 1, v0
        v_and_b32 v19, 1, v19
        v_lshlrev_b32 v19, 3, v19
        v_add_u32 v18, v18, v19
        s_add_u32 {t2}, {t2}, {L_VBUF}
        v_add_u32 v18, {t2}, v18
        v_add_u32 v19, {L_CONST}, v19
        v_and_b32 v20, 16, v0
        v_cmp_eq_u32 vcc, 0, v20
        v_mov_b32 v21, 1024
        v_cndmask_b32 v{AV}, v19, v18, vcc
        v_cndmask_b32 v{VST}, 0, v21, vcc
        """)
        e(f"s_waitcnt lgkmcnt(0)")
        e(f"v_readfirstlane_b32 {S_FAST}, v17")
        for i in range(9):
            if i < 8:
                lk, ld = e.label("SINV"), e.label("SOK")
                e(f"s_cmp_gt_i32 {NSK}, {i}")
                e(f"s_cbranch_scc1 {lk}")
                e(f"v_mfma_f32_32x32x16_bf16 {vr(S0+16*i,16)}, {vr(KF+4*i)}, {vr(QF)}, 0")
                e(f"s_branch {ld}")
                e(f"{lk}:")
                for r in range(16):
                    e(f"v_mov_b32 v{S0+16*i+r}, 0xff800000")
                e(f"{ld}:")
            else:
                e(f"v_mfma_f32_32x32x16_bf16 {vr(S0+16*i,16)}, {vr(KF+4*i)}, {vr(QF)}, 0")
        for r in range(16):
            e(f"v_mov_b32 v{OA+r}, 0")
        e(f"s_nop 7")
        e(f"s_nop 7")
        S8, Sf = S0 + 128, S0
        for r in range(16):
            e(f"v_cndmask_b32 v{S8+r}, v{Sf+r}, v{S8+r}, s[{MASK0+2*r}:{MASK0+2*r+1}]")
        self.stamp(20)
        lg = Q(15)
        e(f"v_add_u32 v{AV}, v{AV}, v{VST}")
        def rd_v(slot, tag):
            b = KF + 8 * slot
            for half in range(2):
                e(f"ds_read_b64_tr_b16 v[{b+4*half}:{b+4*half+1}], v{AV} offset:{half*256}"); lg.issue()
                e(f"ds_read_b64_tr_b16 v[{b+4*half+2}:{b+4*half+3}], v{AV} offset:{half*256+128}"); lg.issue((tag, half))
        rd_v(0, 1)
        e(f"v_add_u32 v{AV}, v{AV}, v{VST}")
        rd_v(1, 2)
        vals = [S0 + 16 * i + r for i in range(1, 9) for r in range(16)]
        ch = [MX, TM, TM + 1, TM + 2]
        for c4 in range(4):
            part = vals[c4 * 32:(c4 + 1) * 32]
            e(f"v_max3_f32 v{ch[c4]}, v{part[0]}, v{part[1]}, v{part[2]}")
        for k in range(3, 31, 2):
            for c4 in range(4):
                part = vals[c4 * 32:(c4 + 1) * 32]
                e(f"v_max3_f32 v{ch[c4]}, v{ch[c4]}, v{part[k]}, v{part[k+1]}")
        for c4 in range(4):
            part = vals[c4 * 32:(c4 + 1) * 32]
            e(f"v_max_f32 v{ch[c4]}, v{ch[c4]}, v{part[31]}")
        e(f"v_max3_f32 v{MX}, v{MX}, v{TM}, v{TM+1}")
        e(f"v_max_f32 v{MX}, v{MX}, v{TM+2}")
        e(f"v_mov_b32 v{TM}, v{MX}")
        e(f"v_permlane32_swap_b32 v{MX}, v{TM}")
        e(f"v_max_f32 v{MX}, v{MX}, v{TM}")
        self.stamp(21)
        order = [1, 2, 3, 4, 5, 6, 7, 8]
        for n, i in enumerate(order):
            Sb = S0 + 16 * i
            for r in range(16):
                e(f"v_sub_f32 v{Sb+r}, v{Sb+r}, v{MX}")
            for r in range(16):
                e(f"v_exp_f32 v{Sb+r}, v{Sb+r}")
            P = PP + 8 * (n & 1)
            if i < 8:
                for r in range(8):
                    e(f"v_cvt_pk_bf16_f32 v{P+r}, v{Sb+2*r}, v{Sb+2*r+1}")
            else:
                for r in range(16):
                    m = f"s[{MASK0+2*r}:{MASK0+2*r+1}]"
                    e(f"v_cndmask_b32 v{Sf+r}, v{Sb+r}, 0, {m}")
                    e(f"v_cndmask_b32 v{Sb+r}, 0, v{Sb+r}, {m}")
                for r in range(8):
                    e(f"v_cvt_pk_bf16_f32 v{P+r}, v{Sb+2*r}, v{Sb+2*r+1}")
            slot = n % 3
            b = KF + 8 * slot
            lk = None
            if i < 8:
                lk = e.label("PVSK")
                e(f"s_waitcnt lgkmcnt({lg.cnt((i,1))})")
                e(f"s_cmp_gt_i32 {NSK}, {i}")
                e(f"s_cbranch_scc1 {lk}")
            else:
                e(f"s_waitcnt lgkmcnt({lg.cnt((i,1))})")
            e(f"v_mfma_f32_32x32x16_bf16 {vr(OA,16)}, {vr(b)}, {vr(P)}, {vr(OA,16)}")
            e(f"v_mfma_f32_32x32x16_bf16 {vr(OA,16)}, {vr(b+4)}, {vr(P+4)}, {vr(OA,16)}")
            if lk: e(f"{lk}:")
            nn = n + 2
            if nn < len(order):
                e(f"v_add_u32 v{AV}, v{AV}, v{VST}")
                rd_v(nn % 3, order[nn])
            elif nn == len(order):
                e(f"v_lshlrev_b32 v{TM}, 3, v{VST}")
                e(f"v_sub_u32 v{AV}, v{AV}, v{TM}")
                rd_v(nn % 3, 0)
        P = PP
        for r in range(8):
            e(f"v_cvt_pk_bf16_f32 v{P+r}, v{Sf+2*r}, v{Sf+2*r+1}")
        b = KF + 8 * (len(order) % 3)
        lk = e.label("PVSK")
        e(f"s_waitcnt lgkmcnt(0)")
        e(f"s_cmp_gt_i32 {NSK}, 0")
        e(f"s_cbranch_scc1 {lk}")
        e(f"v_mfma_f32_32x32x16_bf16 {vr(OA,16)}, {vr(b)}, {vr(P)}, {vr(OA,16)}")
        e(f"v_mfma_f32_32x32x16_bf16 {vr(OA,16)}, {vr(b+4)}, {vr(P+4)}, {vr(OA,16)}")
        e(f"{lk}:")
        e(f"s_nop 7")
        e(f"s_nop 7")
        self.stamp(22)
        e(f"v_rcp_f32 v{TM}, v{OA+8}")
        for i in range(4):
            e(f"v_pk_mul_f32 v[{OA+2*i}:{OA+2*i+1}], v[{OA+2*i}:{OA+2*i+1}], v[{TM}:{TM+1}] op_sel_hi:[1,0]")
        for i in range(4):
            e(f"v_cvt_pk_bf16_f32 v{PP+i}, v{OA+2*i}, v{OA+2*i+1}")
        e(f"s_and_b32 {t0}, {S_W}, 3")
        e(f"s_lshl_b32 {t1}, {S_C}, 2")
        e(f"s_add_u32 {t1}, {t1}, {t0}")
        e(f"s_lshl_b32 {t1}, {t1}, 15")
        e(f"s_lshr_b32 {t2}, {S_W}, 2")
        e(f"s_lshl_b32 {t3}, {S_P}, 1")
        e(f"s_add_u32 {t3}, {t3}, {t2}")
        e(f"s_lshl_b32 {t3}, {t3}, 10")
        e(f"s_add_u32 {t1}, {t1}, {t3}")
        e(f"s_lshl_b32 {t3}, {S_LAY}, 21")
        e(f"s_add_u32 {t1}, {t1}, {t3}")
        e(f"s_add_u32 {t1}, {t1}, {WS_OF}")
        self.store_mode(f"buffer_store_dwordx4 {vr(PP)}, v1, {SRD_WS}, {t1} offen")
        e(f"s_lshl_b32 {t0}, {t0}, 1")
        e(f"s_add_u32 {t0}, {t0}, {t2}")
        e(f"s_lshl_b32 {t0}, {t0}, 7")
        e(f"s_lshl_b32 {t3}, {S_P}, 2")
        e(f"s_add_u32 {t0}, {t0}, {t3}")
        e(f"s_add_u32 {t0}, {t0}, {S_FLB}")
        e(f"s_add_u32 {t0}, {t0}, {WS_FLAGS + FL1}")
        e(f"s_waitcnt vmcnt(0)")
        self.flag_store(t0, TM)
        self.barrier("B_d")
        self.stamp(5)

    def tile64_addr(self, akeep, asend):
        e = self.e
        t0 = T[0]
        e(f"""
        v_lshrrev_b32 v16, 5, v0
        v_lshlrev_b32 v16, 2, v16
        v_and_b32 v17, 15, v0
        v_lshrrev_b32 v17, 2, v17
        v_add_u32 v16, v16, v17
        v_lshlrev_b32 v16, 7, v16
        v_lshrrev_b32 v17, 1, v17
        s_lshr_b32 {t0}, {S_W}, 1
        v_xor_b32 v17, {t0}, v17
        v_and_b32 v17, 1, v17
        v_lshlrev_b32 v17, 6, v17
        v_add_u32 v16, v16, v17
        v_lshrrev_b32 v17, 4, v0
        v_and_b32 v17, 1, v17
        v_lshlrev_b32 v17, 5, v17
        v_add_u32 v16, v16, v17
        v_and_b32 v17, 3, v0
        v_lshlrev_b32 v17, 3, v17
        v_add_u32 v16, v16, v17
        s_lshl_b32 {t0}, {t0}, 11
        v_add_u32 v{akeep}, {t0}, v16
        v_xor_b32 v{asend}, 64, v{akeep}
        """)
    def tg64(self, dst):
        e = self.e
        e(f"s_lshr_b32 {T[7]}, {S_P}, 3")
        e(f"s_lshl_b32 {T[7]}, {T[7]}, 1")
        e(f"s_and_b32 {dst}, {S_W}, 1")
        e(f"s_add_u32 {T[7]}, {T[7]}, {dst}")
        e(f"s_lshl_b32 {dst}, {S_C}, 2")
        e(f"s_add_u32 {dst}, {dst}, {T[7]}")
    def reduce_exchange(self, red, accK, accS, tmp):
        e = self.e
        t0 = T[0]
        return
    def epilogue64(self, accK, RX, red, final_ok):
        e = self.e
        for i in range(8):
            e(f"v_pk_add_f32 v[{accK+2*i}:{accK+2*i+1}], v[{accK+2*i}:{accK+2*i+1}], v[{RX+2*i}:{RX+2*i+1}]")
        for i in range(8):
            e(f"v_lshlrev_b32 v{RX+2*i}, 16, v{2+i}")
            e(f"v_and_b32 v{RX+2*i+1}, 0xffff0000, v{2+i}")
        for i in range(8):
            e(f"v_pk_add_f32 v[{accK+2*i}:{accK+2*i+1}], v[{accK+2*i}:{accK+2*i+1}], v[{RX+2*i}:{RX+2*i+1}]")
        for i in range(8):
            e(f"v_cvt_pk_bf16_f32 v{2+i}, v{accK+2*i}, v{accK+2*i+1}")
        e(f"v_pk_add_f32 v[{RX}:{RX+1}], v[{accK}:{accK+1}], v[{accK+2}:{accK+3}]")
        e(f"v_pk_mul_f32 v[{RX+2}:{RX+3}], v[{accK}:{accK+1}], v[{accK}:{accK+1}]")
        e(f"v_pk_fma_f32 v[{RX+2}:{RX+3}], v[{accK+2}:{accK+3}], v[{accK+2}:{accK+3}], v[{RX+2}:{RX+3}]")
        for i in range(2, 8):
            e(f"v_pk_add_f32 v[{RX}:{RX+1}], v[{RX}:{RX+1}], v[{accK+2*i}:{accK+2*i+1}]")
            e(f"v_pk_fma_f32 v[{RX+2}:{RX+3}], v[{accK+2*i}:{accK+2*i+1}], v[{accK+2*i}:{accK+2*i+1}], v[{RX+2}:{RX+3}]")
        e(f"v_add_f32 v16, v{RX}, v{RX+1}")
        e(f"v_add_f32 v17, v{RX+2}, v{RX+3}")
        e(f"v_mov_b32 v18, v16")
        e(f"v_mov_b32 v19, v17")
        e(f"v_permlane32_swap_b32 v16, v18")
        e(f"v_permlane32_swap_b32 v17, v19")
        e(f"v_add_f32 v16, v16, v18")
        e(f"v_add_f32 v17, v17, v19")
    def stats_store(self, tg, stbuf_sgpr):
        e = self.e
        t0, t1 = T[0], T[1]
        e(f"s_lshl_b32 {t0}, {tg}, 12")
        e(f"s_add_u32 {t0}, {t0}, {stbuf_sgpr}")
        e(f"s_and_b32 {t1}, {S_P}, 7")
        e(f"s_lshl_b32 {t1}, {t1}, 9")
        e(f"s_add_u32 {t0}, {t0}, {t1}")
        e(f"s_lshr_b32 {t1}, {S_W}, 1")
        e(f"s_lshl_b32 {t1}, {t1}, 3")
        e(f"s_add_u32 {t0}, {t0}, {t1}")
        e(f"s_mov_b32 exec_hi, 0")
        self.store_mode(f"buffer_store_dwordx2 v[16:17], v1, {SRD_WS}, {t0} offen")
        e(f"s_mov_b32 exec_hi, -1")
    def flag64(self, fl):
        e = self.e
        t0, t1 = T[0], T[1]
        e(f"s_lshl_b32 {t0}, {T[7]}, 7")
        e(f"s_and_b32 {t1}, {S_P}, 7")
        e(f"s_lshl_b32 {t1}, {t1}, 1")
        e(f"s_add_u32 {t0}, {t0}, {S_FLB}")
        e(f"s_lshl_b32 {t1}, {t1}, 2")
        e(f"s_add_u32 {t0}, {t0}, {t1}")
        e(f"s_lshr_b32 {t1}, {S_W}, 1")
        e(f"s_lshl_b32 {t1}, {t1}, 2")
        e(f"s_add_u32 {t0}, {t0}, {t1}")
        e(f"s_add_u32 {t0}, {t0}, {WS_FLAGS + fl}")
        e(f"s_waitcnt vmcnt(0)")
        self.flag_store(t0, 18)
    def exchange(self, red, accS, RX, bf, bg):
        e = self.e
        t0 = T[0]
        if bf: self.barrier(bf)
        e(f"s_and_b32 {t0}, {S_W}, 1")
        e(f"s_lshl_b32 {t0}, {t0}, 1")
        e(f"s_lshr_b32 {T[1]}, {S_W}, 1")
        e(f"s_add_u32 {t0}, {t0}, {T[1]}")
        e(f"s_lshl_b32 {t0}, {t0}, 12")
        e(f"s_add_u32 {t0}, {t0}, {red}")
        e(f"v_add_u32 v20, {t0}, v1")
        e(f"v_xor_b32 v21, 0x1000, v20")
        e(f"s_nop 7")
        e(f"s_nop 3")
        for q in range(4):
            e(f"ds_write_b128 v21, {vr(accS+4*q)} offset:{q*1024}")
        e(f"s_waitcnt lgkmcnt(0)")
        self.barrier(bg)
        for q in range(4):
            e(f"ds_read_b128 {vr(RX+4*q)}, v20 offset:{q*1024}")
        e(f"s_waitcnt lgkmcnt(0)")

    def wo_compute(self):
        e = self.e
        ACT = 128; accK, accS = 80, 96; RING = 48; AKP, ASN = 12, 13; RX = 112
        t0, t1, TG = T[0], T[1], T[6]
        self.tile64_addr(AKP, ASN)
        self.tg64(TG)
        e(f"s_lshl_b32 {t0}, {T[7]}, 1")
        e(f"s_lshr_b32 {t1}, {S_W}, 1")
        e(f"s_add_u32 {t0}, {t0}, {t1}")
        e(f"s_lshl_b32 {t0}, {t0}, 7")
        e(f"s_add_u32 {t0}, {t0}, {S_FLB}")
        e(f"s_add_u32 {t0}, {t0}, {WS_FLAGS + FL1}")
        self.poll(t0, 10, 16, "FL1")
        self.stamp(6)
        e(f"s_lshl_b32 {t0}, {TG}, 15")
        e(f"s_lshl_b32 {t1}, {S_LAY}, 21")
        e(f"s_add_u32 {t0}, {t0}, {t1}")
        e(f"s_lshr_b32 {t1}, {S_W}, 1")
        e(f"s_lshl_b32 {t1}, {t1}, 10")
        e(f"s_add_u32 {t0}, {t0}, {t1}")
        e(f"s_add_u32 {t0}, {t0}, {WS_OF}")
        SA = T[5]
        e(f"s_mov_b32 {SA}, {t0}")
        vq = Q(63)
        def ld(u):
            e(f"buffer_load_dwordx4 {vr(ACT+4*u)}, v1, {SRD_WS}, {SA} offen offset:{(u&1)*2048} sc1"); vq.issue(u)
            if u & 1: e(f"s_add_u32 {SA}, {SA}, 4096")
        NPRE = self.P.get('wo_pre', 12)
        for u in range(NPRE): ld(u)
        lg = Q(15)
        def rd(u):
            sl = RING + 8 * (u % 4)
            for t, a in ((0, AKP), (1, ASN)):
                e(f"ds_read_b64_tr_b16 v[{sl+4*t}:{sl+4*t+1}], v{a} offset:{u*4096}"); lg.issue()
                e(f"ds_read_b64_tr_b16 v[{sl+4*t+2}:{sl+4*t+3}], v{a} offset:{u*4096+1024}"); lg.issue((u, t))
        for u in range(3): rd(u)
        for u in range(16):
            sl = RING + 8 * (u % 4)
            e(f"s_waitcnt vmcnt({vq.cnt(u)}) lgkmcnt({lg.cnt((u,1))})")
            c = "0" if u == 0 else vr(accK, 16)
            e(f"v_mfma_f32_32x32x16_bf16 {vr(accK,16)}, {vr(sl)}, {vr(ACT+4*u)}, {c}")
            if u + 3 < 16: rd(u + 3)
            c = "0" if u == 0 else vr(accS, 16)
            e(f"v_mfma_f32_32x32x16_bf16 {vr(accS,16)}, {vr(sl+4)}, {vr(ACT+4*u)}, {c}")
            if u + NPRE < 16: ld(u + NPRE)
        self.stamp(7)
        self.exchange(RED_WO, accS, RX, "B_f", "B_g")
        self.epilogue64(accK, RX, RED_WO, False)
        e(f"""
        v_and_b32 v20, 15, v0
        v_lshlrev_b32 v20, 4, v20
        v_lshrrev_b32 v21, 4, v0
        v_and_b32 v21, 1, v21
        v_lshlrev_b32 v21, 14, v21
        v_add_u32 v20, v20, v21
        v_lshrrev_b32 v21, 5, v0
        v_lshlrev_b32 v21, 8, v21
        v_add_u32 v20, v20, v21
        s_lshl_b32 {t0}, {TG}, 15
        s_lshl_b32 {t1}, {S_LAY}, 21
        s_add_u32 {t0}, {t0}, {t1}
        s_and_b32 {t1}, {S_P}, 7
        s_lshl_b32 {t1}, {t1}, 11
        s_add_u32 {t0}, {t0}, {t1}
        s_lshr_b32 {t1}, {S_W}, 1
        s_lshl_b32 {t1}, {t1}, 10
        s_add_u32 {t0}, {t0}, {t1}
        s_add_u32 {t0}, {t0}, {WS_X1}
        """)
        self.store_mode([f"buffer_store_dwordx4 v[2:5], v20, {SRD_WS}, {t0} offen",
                         f"buffer_store_dwordx4 v[6:9], v20, {SRD_WS}, {t0} offen offset:512"])
        e(f"s_lshl_b32 {T[2]}, {S_LAY}, 19")
        e(f"s_add_u32 {T[2]}, {T[2]}, {WS_ST}")
        self.stats_store(TG, T[2])
        self.flag64(FL2)
        self.stamp(8)

    def w1_compute(self):
        e = self.e
        ACT = 128; ACC = 72; RING = 32; NR = 10
        A0, A1, A2 = 12, 13, 14
        t0, t1, TG = T[0], T[1], T[6]
        self.barrier("B_h0")
        e(f"""
        v_lshrrev_b32 v16, 4, v0
        v_and_b32 v17, 1, v16
        v_lshlrev_b32 v17, 2, v17
        v_lshrrev_b32 v16, 1, v16
        v_lshlrev_b32 v16, 4, v16
        v_add_u32 v16, v16, v17
        v_and_b32 v17, 15, v0
        v_lshrrev_b32 v17, 2, v17
        v_add_u32 v16, v16, v17
        v_mul_u32_u24 v16, 224, v16
        v_and_b32 v17, 3, v0
        v_lshlrev_b32 v17, 3, v17
        v_add_u32 v{A0}, v16, v17
        v_add_u32 v{A1}, 0x10000, v{A0}
        v_add_u32 v{A2}, 0x20000, v{A0}
        s_lshl_b32 {TG}, {S_C}, 2
        s_add_u32 {TG}, {TG}, {S_W}
        s_lshl_b32 {t0}, {S_W}, 7
        s_add_u32 {t0}, {t0}, {S_FLB}
        s_add_u32 {t0}, {t0}, {WS_FLAGS + FL2}
        """)
        self.poll(t0, 10, 16, "FL2")
        self.stamp(9)
        SA, SB = T[5], T[4]
        e(f"s_lshl_b32 {SA}, {TG}, 15")
        e(f"s_lshl_b32 {t1}, {S_LAY}, 21")
        e(f"s_add_u32 {SA}, {SA}, {t1}")
        e(f"s_add_u32 {SA}, {SA}, {WS_X1}")
        e(f"s_add_u32 {SB}, {SA}, 16384")
        vq = Q(63)
        def ld(kb):
            e(f"buffer_load_dwordx4 {vr(ACT+8*kb)}, v1, {SRD_WS}, {SA} offen offset:{(kb&3)*1024} sc1"); vq.issue()
            e(f"buffer_load_dwordx4 {vr(ACT+8*kb+4)}, v1, {SRD_WS}, {SB} offen offset:{(kb&3)*1024} sc1"); vq.issue(kb)
            if (kb & 3) == 3 and kb < 15:
                e(f"s_add_u32 {SA}, {SA}, 4096")
                e(f"s_add_u32 {SB}, {SB}, 4096")
        KPRE = self.P.get('w1_pre', 6)
        for kb in range(2): ld(kb)
        e(f"s_lshl_b32 {t0}, {TG}, 12")
        e(f"s_lshl_b32 {t1}, {S_LAY}, 19")
        e(f"s_add_u32 {t0}, {t0}, {t1}")
        e(f"s_add_u32 {t0}, {t0}, {WS_ST}")
        for u in range(4):
            e(f"buffer_load_dwordx4 {vr(16+4*u)}, v1, {SRD_WS}, {t0} offen offset:{u*1024} sc1"); vq.issue()
        for kb in range(2, KPRE): ld(kb)
        self.barrier("B_h")
        self.stamp(18)
        lg = Q(15)
        seq = [(kb, nt) for kb in range(16) for nt in range(7)]
        def rd(n):
            kb, nt = seq[n]
            sl = RING + 4 * (n % NR)
            for rdn in range(2):
                addr = W1_BASE(kb) + rdn * 8 * 224 + nt * 32
                if addr >= 131072: a, off = A2, addr - 131072
                elif addr >= 65536: a, off = A1, addr - 65536
                else: a, off = A0, addr
                e(f"ds_read_b64_tr_b16 v[{sl+2*rdn}:{sl+2*rdn+1}], v{a} offset:{off}"); lg.issue((n, rdn))
        PRE = 7
        for n in range(PRE): rd(n)
        for n, (kb, nt) in enumerate(seq):
            sl = RING + 4 * (n % NR)
            if nt == 0:
                e(f"s_waitcnt vmcnt({vq.cnt(kb)}) lgkmcnt({lg.cnt((n,1))})")
            else:
                e(f"s_waitcnt lgkmcnt({lg.cnt((n,1))})")
            for tt in range(2):
                acc = ACC + (nt * 2 + tt) * 4
                c = "0" if kb == 0 else vr(acc)
                e(f"v_mfma_f32_16x16x32_bf16 {vr(acc)}, {vr(sl)}, {vr(ACT+8*kb+4*tt)}, {c}")
                if tt == 0 and n + PRE < len(seq): rd(n + PRE)
            if nt == 1 and kb + KPRE < 16: ld(kb + KPRE)
            if nt == 6 and kb == self.P.get("pw_kb", 10): self.barrier("PW")
        self.barrier("B_i")
        self.stamp(10)
        XA = RING
        e(f"v_and_b32 v60, 15, v0")
        e(f"v_lshlrev_b32 v60, 3, v60")
        e(f"v_add_u32 v60, {L_XW1}, v60")
        for nt in range(7):
            e(f"ds_read_b64 v[{XA+4*nt}:{XA+4*nt+1}], v60 offset:{nt*128}")
            e(f"v_mov_b32 v{XA+4*nt+2}, 0")
            e(f"v_mov_b32 v{XA+4*nt+3}, 0")
        self.sum_partials(16, 16, 17)
        PM, PS, RS = 24, 25, 26
        self.stats_finalize(16, 17, 20, PM, PS, RS)
        e(f"v_and_b32 v{PS}, 0xffff, v{PS}")
        E0, E1 = 60, 64
        R0, R1 = 28, 30
        e(f"v_mov_b32 v{E0}, v{PM}")
        e(f"v_mov_b32 v{E1}, v{PM}")
        e(f"v_mov_b32 v{E0+1}, v{PS}")
        e(f"v_mov_b32 v{E1+1}, v{PS}")
        e(f"v_mov_b32 v{R0}, v{RS}")
        e(f"v_mov_b32 v{R1}, v{RS}")
        e(f"v_permlane16_swap_b32 v{E0}, v{E1}")
        e(f"v_permlane16_swap_b32 v{E0+1}, v{E1+1}")
        e(f"v_permlane16_swap_b32 v{R0}, v{R1}")
        e(f"v_cmp_gt_u32 vcc, 16, v0")
        for E in (E0, E1):
            e(f"v_cndmask_b32 v{E}, 0, v{E}, vcc")
            e(f"v_cndmask_b32 v{E+1}, 0, v{E+1}, vcc")
            e(f"v_mov_b32 v{E+2}, 0")
            e(f"v_mov_b32 v{E+3}, 0")
        e(f"s_waitcnt lgkmcnt(0)")
        for nt in range(7):
            for tt, E in ((0, E0), (1, E1)):
                acc = ACC + (nt * 2 + tt) * 4
                e(f"v_mfma_f32_16x16x32_bf16 {vr(acc)}, {vr(XA+4*nt)}, {vr(E)}, {vr(acc)}")
        e(f"""
        v_lshrrev_b32 v20, 4, v0
        v_and_b32 v20, 1, v20
        v_lshlrev_b32 v20, 9, v20
        v_lshrrev_b32 v21, 5, v0
        v_lshlrev_b32 v21, 8, v21
        v_add_u32 v20, v20, v21
        v_and_b32 v21, 15, v0
        v_lshlrev_b32 v21, 4, v21
        v_add_u32 v20, v20, v21
        s_mul_i32 {t0}, {TG}, 114688
        s_mul_i32 {t1}, {S_LAY}, {HF_L}
        s_add_u32 {t0}, {t0}, {t1}
        s_mul_i32 {t1}, {S_P}, 7168
        s_add_u32 {t0}, {t0}, {t1}
        s_add_u32 {t0}, {t0}, {WS_HF}
        """)
        OUT = 128
        stores = []
        for nt in range(7):
            for tt, R in ((0, R0), (1, R1)):
                acc = ACC + (nt * 2 + tt) * 4
                for r in range(4):
                    e(f"v_max_f32 v{acc+r}, 0, v{acc+r}")
                for i in range(2):
                    e(f"v_pk_mul_f32 v[{acc+2*i}:{acc+2*i+1}], v[{acc+2*i}:{acc+2*i+1}], v[{R}:{R+1}] op_sel_hi:[1,0]")
                for i in range(2):
                    e(f"v_pk_mul_f32 v[{acc+2*i}:{acc+2*i+1}], v[{acc+2*i}:{acc+2*i+1}], v[{acc+2*i}:{acc+2*i+1}]")
                for i in range(2):
                    e(f"v_cvt_pk_bf16_f32 v{OUT+4*nt+2*tt+i}, v{acc+2*i}, v{acc+2*i+1}")
            e(f"v_permlane32_swap_b32 v{OUT+4*nt}, v{OUT+4*nt+2}")
            e(f"v_permlane32_swap_b32 v{OUT+4*nt+1}, v{OUT+4*nt+3}")
        e(f"s_add_u32 {t1}, {t0}, 4096")
        st = []
        for nt in range(7):
            base, off = (t0, nt * 1024) if nt < 4 else (t1, (nt - 4) * 1024)
            st.append(f"buffer_store_dwordx4 {vr(OUT+4*nt)}, v20, {SRD_WS}, {base} offen offset:{off}")
        self.store_mode(st)
        e(f"s_lshl_b32 {t0}, {S_W}, 7")
        e(f"s_lshl_b32 {t1}, {S_P}, 2")
        e(f"s_add_u32 {t0}, {t0}, {t1}")
        e(f"s_add_u32 {t0}, {t0}, {S_FLB}")
        e(f"s_add_u32 {t0}, {t0}, {WS_FLAGS + FL3}")
        e(f"s_waitcnt vmcnt(0)")
        self.flag_store(t0, 18)
        self.stamp(11)

    def w2_compute(self):
        e = self.e
        ACT = 128; NA = 32; accK, accS = 80, 96; RING = 48; RX = 112
        AK = [12, 14, 22]; AS = [13, 15, 23]
        t0, t1, TG = T[0], T[1], T[6]
        self.tile64_addr(AK[0], AS[0])
        for i in (1, 2):
            e(f"v_add_u32 v{AK[i]}, {i*0x10000}, v{AK[0]}")
            e(f"v_add_u32 v{AS[i]}, {i*0x10000}, v{AS[0]}")
        self.tg64(TG)
        e(f"s_mov_b32 s36, s{S_B2[0]}")
        e(f"s_and_b32 s37, s{S_B2[1]}, 0xffff")
        e(f"s_mov_b32 s38, 1024")
        e(f"s_mov_b32 s39, 0x20000")
        e(f"s_and_b32 {t0}, {S_P}, 7")
        e(f"s_lshl_b32 {t0}, {t0}, 7")
        e(f"s_lshr_b32 {t1}, {S_W}, 1")
        e(f"s_lshl_b32 {t1}, {t1}, 6")
        e(f"s_add_u32 {t0}, {t0}, {t1}")
        e(f"v_lshrrev_b32 v16, 5, v0")
        e(f"v_lshlrev_b32 v16, 3, v16")
        for q in range(4):
            e(f"buffer_load_dwordx2 v[{RX+2*q}:{RX+2*q+1}], v16, {SRD_T}, {t0} offen offset:{16*q}")
        e(f"s_lshl_b32 {t0}, {T[7]}, 7")
        e(f"s_add_u32 {t0}, {t0}, {S_FLB}")
        e(f"s_add_u32 {t0}, {t0}, {WS_FLAGS + FL3}")
        self.poll(t0, 10, 16, "FL3")
        self.stamp(12)
        e(f"s_mul_i32 {t0}, {TG}, 114688")
        e(f"s_mul_i32 {t1}, {S_LAY}, {HF_L}")
        e(f"s_add_u32 {t0}, {t0}, {t1}")
        e(f"s_lshr_b32 {t1}, {S_W}, 1")
        e(f"s_lshl_b32 {t1}, {t1}, 10")
        e(f"s_add_u32 {t0}, {t0}, {t1}")
        SA = T[5]
        e(f"s_add_u32 {SA}, {t0}, {WS_HF}")
        vq = Q(63)
        def ld(u):
            e(f"buffer_load_dwordx4 {vr(ACT+4*(u%NA))}, v1, {SRD_WS}, {SA} offen offset:{(u&1)*2048} sc1"); vq.issue(u)
            if u & 1: e(f"s_add_u32 {SA}, {SA}, 4096")
        NPRE = self.P.get('w2_pre', 20)
        for u in range(NPRE): ld(u)
        for q in range(4):
            for i in range(2):
                e(f"v_lshlrev_b32 v{accK+4*q+2*i}, 16, v{RX+2*q+i}")
                e(f"v_and_b32 v{accK+4*q+2*i+1}, 0xffff0000, v{RX+2*q+i}")
        self.barrier("B_j")
        self.stamp(19)
        lg = Q(15)
        def rd(u):
            sl = RING + 8 * (u % 4)
            base = W2_SLOT(u) * 4096
            for t, AA in ((0, AK), (1, AS)):
                for rdn in range(2):
                    addr = base + rdn * 1024
                    a = AA[addr >> 16]; off = addr & 0xffff
                    e(f"ds_read_b64_tr_b16 v[{sl+4*t+2*rdn}:{sl+4*t+2*rdn+1}], v{a} offset:{off}"); lg.issue((u, t, rdn))
        for u in range(3): rd(u)
        for u in range(56):
            sl = RING + 8 * (u % 4)
            if u + 3 == 39: self.barrier("Y")
            e(f"s_waitcnt vmcnt({vq.cnt(u)}) lgkmcnt({lg.cnt((u,1,1))})")
            if u % 8 == 0: self.stamp(24 + u // 8)
            e(f"v_mfma_f32_32x32x16_bf16 {vr(accK,16)}, {vr(sl)}, {vr(ACT+4*(u%NA))}, {vr(accK,16)}")
            if u + 3 < 56: rd(u + 3)
            c = "0" if u == 0 else vr(accS, 16)
            e(f"v_mfma_f32_32x32x16_bf16 {vr(accS,16)}, {vr(sl+4)}, {vr(ACT+4*(u%NA))}, {c}")
            if u + NPRE < 56: ld(u + NPRE)
            if u == 16: self.barrier("X")
        self.stamp(13)
        self.exchange(RED_W2, accS, RX, None, "B_k")
        self.epilogue64(accK, RX, RED_W2, True)
        lf, ld_ = e.label("FINAL"), e.label("W2D")
        e(f"s_cmp_eq_u32 {S_LAY}, {self.nlayers-1}")
        e(f"s_cbranch_scc1 {lf}")
        e(f"""
        s_lshl_b32 {t0}, {TG}, 15
        s_and_b32 {t1}, {S_P}, 7
        s_lshl_b32 {t1}, {t1}, 12
        s_add_u32 {t0}, {t0}, {t1}
        s_lshr_b32 {t1}, {S_W}, 1
        s_lshl_b32 {t1}, {t1}, 11
        s_add_u32 {t0}, {t0}, {t1}
        s_add_u32 {t0}, {t0}, {WS_XF}
        """)
        self.store_mode([f"buffer_store_dwordx4 v[2:5], v1, {SRD_WS}, {t0} offen",
                         f"buffer_store_dwordx4 v[6:9], v1, {SRD_WS}, {t0} offen offset:1024"])
        e(f"s_mov_b32 {T[2]}, {WS_ST + 0x40000}")
        self.stats_store(TG, T[2])
        self.flag64(FL4)
        e(f"s_branch {ld_}")
        e(f"{lf}:")
        e(f"""
        v_and_b32 v20, 31, v0
        v_lshlrev_b32 v20, 10, v20
        v_lshrrev_b32 v21, 5, v0
        v_lshlrev_b32 v21, 3, v21
        v_add_u32 v20, v20, v21
        s_lshl_b32 {t0}, {TG}, 15
        s_and_b32 {t1}, {S_P}, 7
        s_lshl_b32 {t1}, {t1}, 7
        s_add_u32 {t0}, {t0}, {t1}
        s_lshr_b32 {t1}, {S_W}, 1
        s_lshl_b32 {t1}, {t1}, 6
        s_add_u32 {t0}, {t0}, {t1}
        """)
        for q in range(4):
            e(f"buffer_store_dwordx2 v[{2+2*q}:{3+2*q}], v20, {SRD_OUT}, {t0} offen offset:{16*q}")
        e(f"{ld_}:")
        self.stamp(14)

    def helper(self):
        e = self.e
        VQ, VO, VW1 = 2, 3, 4
        W1V = [4, 5, 6, 7, 8, 9, 22]
        t0, t1, t2, t3 = T[0], T[1], T[2], T[3]
        e("L_HELPER:")
        e(f"s_sub_u32 {S_H}, {S_W}, 4")
        e(f"""
        v_lshrrev_b32 v{VQ}, 2, v0
        v_mul_u32_u24 v{VQ}, 3072, v{VQ}
        v_and_b32 v12, 3, v0
        v_lshlrev_b32 v12, 4, v12
        v_add_u32 v{VQ}, v{VQ}, v12
        v_lshrrev_b32 v{VO}, 3, v0
        v_lshlrev_b32 v{VO}, 10, v{VO}
        v_lshrrev_b32 v12, 4, v0
        v_and_b32 v12, 1, v12
        v_lshlrev_b32 v12, 2, v12
        v_and_b32 v13, 7, v0
        v_xor_b32 v12, v12, v13
        v_lshlrev_b32 v12, 4, v12
        v_add_u32 v{VO}, v{VO}, v12
        """)
        for i, r in enumerate(W1V):
            e(f"v_add_u32 v12, {64*i}, v0")
            e(f"v_mul_u32_u24 v13, 4682, v12")
            e(f"v_lshrrev_b32 v13, 16, v13            ; row = G/14")
            e(f"v_mul_u32_u24 v14, 14, v13")
            e(f"v_sub_u32 v14, v12, v14               ; q")
            e(f"v_mul_u32_u24 v13, 3584, v13")
            e(f"v_lshlrev_b32 v14, 4, v14")
            e(f"v_add_u32 v{r}, v13, v14")
        e(f"v_lshlrev_b32 v24, 7, v0")
        li = e.label("HINIT")
        e(f"s_cmp_lg_u32 {S_H}, 3")
        e(f"s_cbranch_scc1 {li}")
        e(f"""
        v_mov_b32 v12, 0
        v_mov_b32 v13, 0
        v_mov_b32 v14, 0
        v_mov_b32 v15, 0
        s_lshl_b32 {t0}, {S_C}, 4
        s_add_u32 {t0}, {t0}, {S_P}
        s_lshl_b32 {t1}, {t0}, 10
        s_add_u32 {t1}, {t1}, {WS_KVF}
        buffer_store_dwordx4 v[12:15], v1, {SRD_WS}, {t1} offen sc1
        s_lshl_b32 {t1}, {S_P}, 8
        s_add_u32 {t1}, {t1}, {S_FLB}
        s_add_u32 {t1}, {t1}, {WS_FLAGS}
        s_mov_b32 exec_lo, 0xffff
        s_mov_b32 exec_hi, 0
        buffer_store_dwordx4 v[12:15], v1, {SRD_WS}, {t1} offen sc1
        s_mov_b64 exec, -1
        v_mov_b32 v16, 0x3f80
        v_mov_b32 v17, 0
        v_mov_b32 v18, 0
        v_mov_b32 v19, 0
        v_lshlrev_b32 v20, 7, v0
        v_add_u32 v20, {L_CONST}, v20
        s_mov_b64 exec, 15
        ds_write_b128 v20, v[16:19]
        s_mov_b64 exec, -1
        s_getreg_b32 {t2}, hwreg(HW_REG_XCC_ID)
        s_and_b32 {t2}, {t2}, 15
        s_or_b32 {t2}, {t2}, 0x80
        s_mov_b32 s36, s{S_DBG[0]}
        s_and_b32 s37, s{S_DBG[1]}, 0xffff
        s_mov_b32 s38, 256
        s_mov_b32 s39, 0x20000
        v_mov_b32 v16, {t2}
        s_waitcnt vmcnt(0) lgkmcnt(0)
        s_mov_b64 exec, 1
        buffer_store_byte v16, off, {SRD_T}, {t0} sc1
        s_mov_b64 exec, -1
        """)
        e(f"{li}:")
        e("L_HLAYER:")
        self.stamp(0)
        l3, l2, lq_end = e.label("H3Q"), e.label("H2Q"), e.label("HQE")
        e(f"s_cmp_eq_u32 {S_H}, 3")
        e(f"s_cbranch_scc1 {l3}")
        e(f"s_cmp_eq_u32 {S_H}, 2")
        e(f"s_cbranch_scc1 {l2}")
        def wq_issue():
            e(f"s_add_u32 {t0}, {S_H}, 1")
            e(f"s_lshl_b32 {t0}, {t0}, 10")
            e(f"s_cmp_eq_u32 {S_H}, 2")
            e(f"s_cselect_b32 {t0}, 0, {t0}")
            e(f"s_lshl_b32 {t1}, {S_P}, 6")
            e(f"s_add_u32 {t0}, {t0}, {t1}")
            e(f"s_lshl_b32 {t1}, {S_H}, 15")
            self.dma_loop(SRD_WQKV, VQ, t0, 16 * 3072, t1, 1024, 32)
        def cs_setup():
            e(f"""
            v_and_b32 v16, 15, v0
            v_lshrrev_b32 v16, 2, v16
            v_lshlrev_b32 v16, 6, v16
            v_lshrrev_b32 v17, 4, v0
            v_and_b32 v17, 1, v17
            v_lshlrev_b32 v17, 5, v17
            v_add_u32 v16, v16, v17
            v_and_b32 v17, 3, v0
            v_lshlrev_b32 v17, 3, v17
            v_add_u32 v16, v16, v17
            v_lshrrev_b32 v17, 5, v0
            v_lshlrev_b32 v17, 9, v17
            v_add_u32 v16, v16, v17
            s_lshl_b32 {t1}, {S_H}, 15
            v_add_u32 v12, {t1}, v16
            """)
            for r in range(48, 52): e(f"v_mov_b32 v{r}, {S_ONES}")
            for r in range(32, 48): e(f"v_mov_b32 v{r}, 0")
        def cs_chunk(c):
            for hf in range(2):
                for s in range(8 * c + 4 * hf, 8 * c + 4 * hf + 4):
                    b = 52 + 4 * (s % 4)
                    e(f"ds_read_b64_tr_b16 v[{b}:{b+1}], v12 offset:{s*1024}")
                    e(f"ds_read_b64_tr_b16 v[{b+2}:{b+3}], v12 offset:{s*1024+256}")
                for s in range(4):
                    b = 52 + 4 * s
                    e(f"s_waitcnt lgkmcnt({6-2*s})")
                    e(f"v_mfma_f32_32x32x16_bf16 v[32:47], v[48:51], v[{b}:{b+3}], v[32:47]")
        def cs_finish():
            e(f"s_nop 7"); e(f"s_nop 3")
            e(f"v_sub_f32 v16, 0, v32")
            e(f"v_cvt_pk_bf16_f32 v17, v16, v16")
            e(f"v_lshlrev_b32 v18, 16, v17")
            e(f"v_sub_f32 v18, v16, v18")
            e(f"v_cvt_pk_bf16_f32 v17, v16, v18")
            e(f"v_and_b32 v19, 31, v0")
            e(f"v_lshlrev_b32 v19, 2, v19")
            e(f"s_lshl_b32 {t1}, {S_H}, 7")
            e(f"s_add_u32 {t1}, {t1}, {L_XWQ}")
            e(f"v_add_u32 v19, {t1}, v19")
            e(f"ds_write_b32 v19, v17")
            e(f"s_waitcnt lgkmcnt(0)")
        wq_issue()
        self.stamp(8)
        lsk = e.label("HCS")
        e(f"s_cmp_eq_u32 {S_LAY}, 0")
        e(f"s_cbranch_scc0 {lsk}")
        cs_setup()
        for c in range(4):
            e(f"s_waitcnt vmcnt({24-8*c})")
            self.stamp(9+c)
            self.barrier(f"Q{c}")
            cs_chunk(c)
        cs_finish()
        e(f"s_branch {lsk}_j")
        e(f"{lsk}:")
        for c in range(4):
            e(f"s_waitcnt vmcnt({24-8*c})")
            self.stamp(9+c)
            self.barrier(f"Q{c}")
        e(f"{lsk}_j:")
        lpf = e.label("PFW")
        if self.P.get("pf_w1", 2) == 1:
            e(f"s_cmp_eq_u32 {S_H}, 0")
            e(f"s_cbranch_scc0 {lpf}")
            self.l2_prefetch(SRD_W1, 512 * 1792 * 2)
            e(f"s_branch {lpf}_j")
            e(f"{lpf}:")
            self.l2_prefetch(SRD_WO, 512 * 512 * 2)
            e(f"{lpf}_j:")
        self.barrier("Q4")
        self.barrier("Q5")
        e(f"s_branch {lq_end}")
        e(f"{l2}:")
        wq_issue()
        self.stamp(8)
        self.barrier("Q0"); self.barrier("Q1"); self.barrier("Q2"); self.barrier("Q3")
        lsk2 = e.label("HCS2")
        e(f"s_cmp_eq_u32 {S_LAY}, 0")
        e(f"s_cbranch_scc0 {lsk2}")
        cs_setup()
        for c in range(3):
            e(f"s_waitcnt vmcnt({24-8*c})")
            cs_chunk(c)
        e(f"s_waitcnt vmcnt(0)")
        self.barrier("Q4")
        cs_chunk(3)
        cs_finish()
        self.barrier("Q5")
        e(f"s_branch {lq_end}")
        e(f"{lsk2}:")
        e(f"s_waitcnt vmcnt(0)")
        self.stamp(12)
        self.barrier("Q4")
        self.barrier("Q5")
        e(f"s_branch {lq_end}")
        e(f"{l3}:")
        for c in range(6): self.barrier(f"Q{c}")
        lr = e.label("HRDY")
        e(f"s_cmp_eq_u32 {S_LAY}, 0")
        e(f"s_cbranch_scc0 {lr}")
        self.ready_check()
        e(f"{lr}:")
        self.halo()
        self.barrier("B_c")
        self.check_stop("qkv")
        e(f"s_branch L_ATTN")
        e(f"{lq_end}:")
        l2b, lwd = e.label("H2B"), e.label("HWD")
        e(f"s_cmp_eq_u32 {S_H}, 2")
        e(f"s_cbranch_scc1 {l2b}")
        e(f"s_and_b32 {t0}, {S_P}, 7")
        e(f"s_lshl_b32 {t0}, {t0}, 7")
        e(f"s_lshl_b32 {t1}, {S_H}, 18")
        e(f"s_add_u32 {t0}, {t0}, {t1}")
        e(f"s_lshl_b32 {t1}, {S_H}, 15")
        self.dma_loop(SRD_WO, VO, t0, 8192, t1, 1024, 32)
        e(f"s_branch {lwd}")
        e(f"{l2b}:")
        for kb in range(4): self.w1_block_static(kb, W1V)
        e(f"{lwd}:")
        self.barrier("B_c")
        lpa = e.label("PFA")
        e(f"s_cmp_eq_u32 {S_H}, 0")
        e(f"s_cbranch_scc0 {lpa}")
        if self.P.get("pf_w1", 2) == 2: self.l2_prefetch(SRD_W1, 512 * 1792 * 2)
        if self.P.get("pf_w2", 3) == 2: self.l2_prefetch(SRD_W2, 1792 * 512 * 2)
        e(f"{lpa}:")
        self.check_stop("qkv")
        e(f"s_branch L_ATTN")
        e("L_H_POSTATTN:")
        self.w1_blocks_dyn(4, 2, W1V)
        lp2 = e.label("PF2")
        e(f"s_cmp_eq_u32 {S_H}, 0")
        e(f"s_cbranch_scc0 {lp2}")
        if self.P.get("pf_w2", 3) == 1: self.l2_prefetch(SRD_W2, 1792 * 512 * 2)
        e(f"{lp2}:")
        self.stamp(16)
        self.barrier("B_f")
        self.barrier("B_g")
        self.check_stop("wo")
        self.stamp(17)
        self.w1_blocks_dyn(12, 1, W1V)
        self.stamp(18)
        e(f"s_waitcnt vmcnt(0)")
        self.stamp(19)
        self.barrier("B_h0")
        lc = e.label("HC1")
        e(f"s_cmp_eq_u32 {S_LAY}, 0")
        e(f"s_cbranch_scc0 {lc}")
        self.colsum_w1()
        e(f"{lc}:")
        self.barrier("B_h")
        self.stamp(24)
        if self.P.get("w2a_late", 1) == 0: self.w2_dma(0, 9, VO)
        self.barrier("PW")
        if self.P.get("w2a_late", 1) == 1: self.w2_dma(0, 9, VO)
        lp4 = e.label("PF4")
        e(f"s_cmp_eq_u32 {S_H}, 0")
        e(f"s_cbranch_scc0 {lp4}")
        if self.P.get("pf_w2", 3) == 3: self.l2_prefetch(SRD_W2, 1792 * 512 * 2)
        e(f"{lp4}:")
        self.stamp(25)
        self.barrier("B_i")
        self.stamp(26)
        self.check_stop("w1")
        self.w2_dma(9, 32, VO)
        self.w2_dma(32, 39, VO)
        t0, t2 = T[0], T[2]
        e(f"s_and_b32 {t0}, {S_P}, 7")
        e(f"s_lshl_b32 {t0}, {t0}, 7")
        e(f"s_lshl_b32 {t2}, {S_H}, 13")
        e(f"s_add_u32 {t0}, {t0}, {t2}")
        e(f"s_add_u32 {t0}, {t0}, {39*32*1024}")
        for i in range(17):
            e(f"buffer_load_dwordx4 {vr(64+4*i)}, v{VO}, {SRD_W2}, {t0} offen")
            if i < 16: e(f"s_add_u32 {t0}, {t0}, {32*1024}")
        self.stamp(27)
        e(f"s_waitcnt vmcnt(17)")
        self.stamp(28)
        self.barrier("B_j")
        e(f"s_waitcnt vmcnt(0)")
        lp3 = e.label("PF3")
        e(f"s_cmp_eq_u32 {S_H}, 0")
        e(f"s_cbranch_scc0 {lp3}")
        e(f"s_cmp_lt_u32 {S_LAY}, {self.nlayers-1}")
        e(f"s_cbranch_scc0 {lp3}")
        if self.P.get("pf_qkv", 1) == 1: self.l2_prefetch(SRD_WQKV, 512 * 1536 * 2)
        e(f"{lp3}:")
        e(f"s_lshl_b32 {t0}, {S_H}, 10")
        e(f"v_add_u32 v12, {t0}, v1")
        e(f"v_add_u32 v13, 0x10000, v12")
        self.barrier("X")
        self.stamp(30)
        for i in range(17):
            addr = W2_SLOT(39 + i) * 4096
            a, off = (12, addr) if addr < 65536 else (13, addr - 65536)
            e(f"ds_write_b128 v{a}, {vr(64+4*i)} offset:{off}")
        e(f"s_waitcnt lgkmcnt(0)")
        lp5 = e.label("PF5")
        e(f"s_cmp_eq_u32 {S_H}, 0")
        e(f"s_cbranch_scc0 {lp5}")
        e(f"s_cmp_lt_u32 {S_LAY}, {self.nlayers-1}")
        e(f"s_cbranch_scc0 {lp5}")
        if self.P.get("pf_qkv", 1) == 2: self.l2_prefetch(SRD_WQKV, 512 * 1536 * 2)
        e(f"{lp5}:")
        self.stamp(13)
        self.barrier("Y")
        self.barrier("B_k")
        self.check_stop("w2")
        e(f"s_add_u32 {S_LAY}, {S_LAY}, 1")
        e(f"s_add_u32 {S_EPOCH}, {S_EPOCH}, 1")
        e(f"s_cmp_lt_u32 {S_LAY}, {self.nlayers}")
        e(f"s_cbranch_scc1 L_HLAYER")
        e(f"s_branch L_END")

    def l2_prefetch(self, srd, total):
        e = self.e
        if not self.P.get("pf", 1): return
        size = total // 32
        t0 = T[0]
        e(f"s_lshr_b32 {t0}, s2, 3")
        e(f"s_mul_i32 {t0}, {t0}, {size}")
        for i in range(size // 8192):
            e(f"buffer_load_dword v23, v24, {srd}, {t0} offen")
            if i + 1 < size // 8192: e(f"s_add_u32 {t0}, {t0}, 8192")
    def w1_block_static(self, kb, W1V):
        e = self.e
        t0 = T[0]
        e(f"s_mul_i32 {t0}, {S_P}, 224")
        e(f"s_add_u32 {t0}, {t0}, {kb*32*3584}")
        for i, r in enumerate(W1V):
            e(f"s_mov_b32 m0, {W1_BASE(kb) + i*1024}")
            e(f"buffer_load_dwordx4 v{r}, {SRD_W1}, {t0} offen lds")
    def w1_blocks_dyn(self, kb0, per, W1V):
        e = self.e
        t0, t1 = T[0], T[1]
        e(f"s_mul_i32 {t1}, {S_H}, {per}")
        e(f"s_mul_i32 {t0}, {t1}, {32*3584}")
        e(f"s_mul_i32 {t1}, {t1}, 7168")
        e(f"s_add_u32 {t1}, {t1}, {W1_BASE(kb0)}")
        e(f"s_mul_i32 {T[2]}, {S_P}, 224")
        e(f"s_add_u32 {t0}, {t0}, {T[2]}")
        e(f"s_add_u32 {t0}, {t0}, {kb0*32*3584}")
        for b in range(per):
            for i, r in enumerate(W1V):
                e(f"s_add_u32 m0, {t1}, {b*7168 + i*1024}")
                e(f"buffer_load_dwordx4 v{r}, {SRD_W1}, {t0} offen lds")
            if b + 1 < per: e(f"s_add_u32 {t0}, {t0}, {32*3584}")
    def w2_dma(self, u0, u1, VO):
        e = self.e
        t0, t1, t2 = T[0], T[1], T[2]
        assert all(W2_SLOT(u) == W2_SLOT(u0) + (u - u0) for u in range(u0, u1))
        e(f"s_and_b32 {t0}, {S_P}, 7")
        e(f"s_lshl_b32 {t0}, {t0}, 7")
        e(f"s_lshl_b32 {t2}, {S_H}, 13")
        e(f"s_add_u32 {t0}, {t0}, {t2}")
        e(f"s_add_u32 {t0}, {t0}, {u0*32*1024}")
        e(f"s_lshl_b32 {t1}, {S_H}, 10")
        e(f"s_add_u32 {t1}, {t1}, {W2_SLOT(u0)*4096}")
        self.dma_loop(SRD_W2, VO, t0, 32 * 1024, t1, 4096, u1 - u0)

    def ready_check(self):
        e = self.e
        t0, t1, t2 = T[0], T[1], T[2]
        e(f"""
        s_lshl_b32 {t0}, {S_C}, 4
        s_add_u32 {t1}, {t0}, {S_P}
        v_mov_b32 v12, {t1}
        v_add_u32 v13, {t0}, v0
        v_cmp_gt_u32 vcc, 16, v0
        v_cndmask_b32 v12, v12, v13, vcc
        s_sub_u32 {t2}, {t1}, 16
        s_cmp_ge_u32 {S_C}, 1
        s_cselect_b32 {t2}, {t2}, {t1}
        v_mov_b32 v13, {t2}
        v_cmp_eq_u32 vcc, 16, v0
        v_cndmask_b32 v12, v12, v13, vcc
        s_sub_u32 {t2}, {t1}, 32
        s_cmp_ge_u32 {S_C}, 2
        s_cselect_b32 {t2}, {t2}, {t1}
        v_mov_b32 v13, {t2}
        v_cmp_eq_u32 vcc, 17, v0
        v_cndmask_b32 v12, v12, v13, vcc
        s_mov_b32 s36, s{S_DBG[0]}
        s_and_b32 s37, s{S_DBG[1]}, 0xffff
        s_mov_b32 s38, 256
        s_mov_b32 s39, 0x20000
        s_mov_b32 {T[19]}, 0
        """)
        l0 = e.label("RDY")
        e(f"{l0}:")
        e(f"buffer_load_ubyte v13, v12, {SRD_T}, 0 offen sc1")
        e(f"s_add_u32 {T[19]}, {T[19]}, 1")
        e(f"s_cmp_gt_u32 {T[19]}, {POLL_LIMIT}")
        e(f"s_cbranch_scc1 L_BAIL")
        e(f"s_waitcnt vmcnt(0)")
        e(f"v_cmp_gt_u32 vcc, 0x80, v13")
        e(f"s_cbranch_vccnz {l0}")
        e(f"s_getreg_b32 {t2}, hwreg(HW_REG_XCC_ID)")
        e(f"s_and_b32 {t2}, {t2}, 15")
        e(f"s_or_b32 {t2}, {t2}, 0x80")
        e(f"v_cmp_eq_u32 vcc, {t2}, v13")
        e(f"s_nop 4")
        e(f"s_and_b32 {t0}, vcc_lo, 0xffff")
        e(f"s_cmp_eq_u32 {t0}, 0xffff")
        e(f"s_cselect_b32 {t0}, 1, 0")
        e(f"v_mov_b32 v13, {t0}")
        e(f"v_mov_b32 v14, {L_MODE}")
        e(f"ds_write_b32 v14, v13")
        e(f"s_waitcnt lgkmcnt(0)")

    def halo(self):
        e = self.e
        t0, t1, t2, t3 = T[0], T[1], T[2], T[3]
        ld = e.label("HALOD")
        e(f"s_cmp_eq_u32 {S_C}, 0")
        e(f"s_cbranch_scc1 {ld}")
        e(f"""
        v_lshrrev_b32 v12, 2, v0
        v_and_b32 v12, 1, v12
        s_cmp_ge_u32 {S_C}, 2
        s_cselect_b32 {t0}, 1, 0
        v_and_b32 v12, {t0}, v12
        s_sub_u32 {t1}, {S_C}, 1
        v_sub_u32 v12, {t1}, v12
        v_lshlrev_b32 v12, 4, v12
        v_add_u32 v12, {S_P}, v12
        v_lshlrev_b32 v12, 2, v12
        v_and_b32 v13, 3, v0
        v_add_u32 v12, v12, v13
        v_lshlrev_b32 v12, 8, v12
        s_mov_b32 {t0}, {WS_KVF}
        """)
        self.poll(t0, 12, 13, "KVF")
        self.stamp(1)
        e(f"s_cmp_ge_u32 {S_C}, 2")
        e(f"s_cselect_b32 {t3}, 0, 4")
        e(f"s_lshl_b32 {t0}, {S_C}, 2")
        e(f"s_add_u32 {t0}, {t0}, {t3}")
        e(f"s_sub_u32 {t0}, {t0}, 8")
        e(f"s_lshl_b32 {t0}, {t0}, 16")
        e(f"s_lshl_b32 {t1}, {S_P}, 12")
        e(f"s_add_u32 {t0}, {t0}, {t1}")
        e(f"s_lshl_b32 {t1}, {S_LAY}, 22")
        e(f"s_add_u32 {t0}, {t0}, {t1}")
        e(f"s_add_u32 {t0}, {t0}, {WS_KV}")
        e(f"s_lshl_b32 {t1}, {t3}, 10")
        lp = e.label("HALO")
        e(f"{lp}:")
        for hd in range(2):
            for kv in range(2):
                e(f"s_add_u32 m0, {t1}, {(L_VBUF if kv else L_KBUF) + hd*12288}")
                e(f"s_add_u32 {t2}, {t0}, {hd*2048 + kv*1024}")
                e(f"buffer_load_dwordx4 v1, {SRD_WS}, {t2} offen sc1 lds")
        e(f"s_add_u32 {t0}, {t0}, 65536")
        e(f"s_add_u32 {t1}, {t1}, 1024")
        e(f"s_add_u32 {t3}, {t3}, 1")
        e(f"s_cmp_lt_u32 {t3}, 8")
        e(f"s_cbranch_scc1 {lp}")
        e(f"s_waitcnt vmcnt(0)")
        e(f"{ld}:")

    def colsum_w1(self):
        e = self.e
        t0, t1 = T[0], T[1]
        e(f"""
        v_lshrrev_b32 v16, 4, v0
        v_and_b32 v17, 1, v16
        v_lshlrev_b32 v17, 2, v17
        v_lshrrev_b32 v16, 1, v16
        v_lshlrev_b32 v16, 4, v16
        v_add_u32 v16, v16, v17
        v_and_b32 v17, 15, v0
        v_lshrrev_b32 v17, 2, v17
        v_add_u32 v16, v16, v17
        v_mul_u32_u24 v16, 224, v16
        v_and_b32 v17, 3, v0
        v_lshlrev_b32 v17, 3, v17
        v_add_u32 v16, v16, v17
        s_mov_b32 s36, s{S_B1[0]}
        s_and_b32 s37, s{S_B1[1]}, 0xffff
        s_mov_b32 s38, 3584
        s_mov_b32 s39, 0x20000
        s_mov_b32 {T[4]}, {S_H}                 ; nt
        """)
        for r in range(48, 52): e(f"v_mov_b32 v{r}, {S_ONES}")
        lp, le = e.label("CS1"), e.label("CS1E")
        e(f"{lp}:")
        e(f"s_lshl_b32 {t0}, {T[4]}, 5")
        e(f"v_add_u32 v12, {t0}, v16")
        e(f"v_add_u32 v13, 0x10000, v12")
        e(f"v_add_u32 v14, 0x20000, v12")
        e(f"s_mul_i32 {t1}, {S_P}, 224")
        e(f"s_add_u32 {t1}, {t1}, {t0}")
        e(f"v_and_b32 v17, 15, v0")
        e(f"v_lshlrev_b32 v17, 1, v17")
        e(f"buffer_load_ushort v33, v17, {SRD_T}, {t1} offen")
        for r in range(36, 40): e(f"v_mov_b32 v{r}, 0")
        for grp in range(4):
            for k in range(4):
                kb = grp * 4 + k
                b = 52 + 4 * k
                for rdn in range(2):
                    addr = W1_BASE(kb) + rdn * 8 * 224
                    a = (12, 13, 14)[addr >> 16]; off = addr & 0xffff
                    e(f"ds_read_b64_tr_b16 v[{b+2*rdn}:{b+2*rdn+1}], v{a} offset:{off}")
            for k in range(4):
                b = 52 + 4 * k
                e(f"s_waitcnt lgkmcnt({6-2*k})")
                e(f"v_mfma_f32_16x16x32_bf16 v[36:39], v[48:51], v[{b}:{b+3}], v[36:39]")
        e(f"s_nop 7")
        e(f"v_sub_f32 v18, 0, v36")
        e(f"v_cvt_pk_bf16_f32 v19, v18, v18")
        e(f"v_lshlrev_b32 v20, 16, v19")
        e(f"v_sub_f32 v20, v18, v20")
        e(f"v_cvt_pk_bf16_f32 v32, v18, v20")
        e(f"v_lshlrev_b32 v17, 2, v17               ; (l&15)*8")
        e(f"s_lshl_b32 {t0}, {T[4]}, 7")
        e(f"s_add_u32 {t0}, {t0}, {L_XW1}")
        e(f"v_add_u32 v17, {t0}, v17")
        e(f"s_waitcnt vmcnt(0)")
        e(f"ds_write_b64 v17, v[32:33]")
        e(f"s_add_u32 {T[4]}, {T[4]}, 4")
        e(f"s_cmp_lt_u32 {T[4]}, 7")
        e(f"s_cbranch_scc1 {lp}")
        e(f"s_waitcnt lgkmcnt(0)")

    def finish(self):
        e = self.e
        for kind, outl, ACT in self.deferred:
            for lo, lb, st in outl:
                e(f"{lo}:")
                for i in range(4):
                    e(f"v_dot2c_f32_bf16 v{16+(i&1)}, {S_ONES}, v{ACT+4*st+i}")
                    e(f"v_dot2c_f32_bf16 v{18+(i&1)}, v{ACT+4*st+i}, v{ACT+4*st+i}")
                e(f"s_branch {lb}")
        e("L_BAIL:")
        e("s_mov_b64 exec, -1")
        e("L_END:")
        if self.P.get("calibrt", 0):
            e(f"s_cmp_ge_u32 s2, 256")
            e(f"s_cbranch_scc1 L_CAL2")
            e("L_CAL:")
            e(f"s_memrealtime s[66:67]")
            e(f"s_waitcnt lgkmcnt(0)")
            e(f"s_sub_u32 s68, s66, s0")
            e(f"s_cmp_lt_u32 s68, {self.P['calibrt']}")
            e(f"s_cbranch_scc1 L_CAL")
            e("L_CAL2:")
        if self.P.get("calib", 0):
            e(f"s_cmp_ge_u32 s2, 256")
            e(f"s_cbranch_scc1 L_CAL2")
            e(f"s_memtime s[64:65]")
            e(f"s_waitcnt lgkmcnt(0)")
            e("L_CAL:")
            e(f"s_memtime s[66:67]")
            e(f"s_waitcnt lgkmcnt(0)")
            e(f"s_sub_u32 s68, s66, s64")
            e(f"s_cmp_lt_u32 s68, {self.P['calib']}")
            e(f"s_cbranch_scc1 L_CAL")
            e("L_CAL2:")
        if self.stamps:
            e(f"s_cmp_ge_u32 s2, 256")
            e(f"s_cbranch_scc1 L_END2")
            e(f"s_lshl_b32 {T[0]}, s2, 3")
            e(f"s_add_u32 {T[0]}, {T[0]}, {S_W}")
            e(f"s_lshl_b32 {T[0]}, {T[0]}, 8")
            e(f"s_add_u32 {T[0]}, {T[0]}, {WS_STAMP}")
            e(f"v_lshlrev_b32 v12, 2, v0")
            e(f"s_memrealtime s[98:99]")
            e(f"s_waitcnt lgkmcnt(0)")
            e(f"v_writelane_b32 v11, s98, 63")
            e(f"buffer_store_dword v11, v12, {SRD_WS}, {T[0]} offen")
            if self.P.get("dbgdump", 0):
                e(f"s_cmp_lg_u32 s2, {self.P.get('dbgwg', 0)}")
                e(f"s_cbranch_scc1 L_END2")
                e(f"s_cmp_lg_u32 {S_W}, 0")
                e(f"s_cbranch_scc1 L_END2")
                sel = [0, 15, 16, 2, 4, 5, 8, 11, 14, 32+4, 32+5, 32+8, 32+11, 32+14, 31, 63]
                for i, l in enumerate(sel):
                    e(f"v_readlane_b32 s{64+i}, v11, {l}")
                e(f"s_nop 4")
                for i in range(16):
                    e(f"v_writelane_b32 v13, s{64+i}, {i}")
                e(f"s_mov_b32 s36, s{S_DBG[0]}")
                e(f"s_and_b32 s37, s{S_DBG[1]}, 0xffff")
                e(f"s_mov_b32 s38, 256")
                e(f"s_mov_b32 s39, 0x20000")
                e(f"s_mov_b64 exec, 0xffff")
                e(f"buffer_store_dword v13, v12, {SRD_T}, 0 offen sc1")
            e("L_END2:")
        e("s_endpgm")

    def build(self):
        e = self.e
        hdr = f"""; Persistent fused 2-layer transformer block (sliding-window attention + squared-relu MLP), gfx950
; @launch grid=(256,1,1) block=(512,1,1) lds={LDS_TOTAL}
.amdgcn_target "amdgcn-amd-amdhsa--gfx950"
.text
.globl {KNAME}
.p2align 8
.type {KNAME},@function
{KNAME}:
"""
        self.prologue()
        self.compute()
        self.helper()
        self.finish()
        tail = f"""
.section .rodata,"a"
.p2align 6
.amdhsa_kernel {KNAME}
  .amdhsa_next_free_vgpr 256
  .amdhsa_next_free_sgpr 102
  .amdhsa_accum_offset 256
  .amdhsa_group_segment_fixed_size 0
  .amdhsa_kernarg_size 88
  .amdhsa_user_sgpr_count 2
  .amdhsa_user_sgpr_kernarg_segment_ptr 1
  .amdhsa_system_sgpr_workgroup_id_x 1
.end_amdhsa_kernel
"""
        return hdr + e.text() + tail

if __name__ == "__main__":
    import argparse
    ap = argparse.ArgumentParser()
    ap.add_argument("-o", default="k.s")
    ap.add_argument("--stop", default=None)
    ap.add_argument("--stamps", action="store_true")
    ap.add_argument("--slow", action="store_true")
    ap.add_argument("-P", action="append", default=[])
    a = ap.parse_args()
    stop = None
    if a.stop:
        n, l = a.stop.split(":"); stop = (n, int(l))
    params = {kv.split("=")[0]: int(kv.split("=")[1]) for kv in a.P}
    g = Gen(stop=stop, stamps=a.stamps, force_slow=a.slow, params=params)
    txt = g.build()
    open(a.o, "w").write(txt)
    print("instructions:", g.e.nins, "nop states added:", g.e.nops_added, "bytes of text:", len(txt))
```

```python
import sys
from emit import Emit

KNAME = "interleave_layers__sliding_block__dense_activation_squared_relu__prompt_kernel"

L_WQ = [0, 32768, 65536]
L_KBUF, L_VBUF, L_QBUF = 98304, 122880, 147456
def W1_BASE(kb):
    if kb < 4: return 65536 + 7168 * kb
    if kb < 12: return 98304 + 7168 * (kb - 4)
    return 7168 * (kb - 12)
def W2_SLOT(u):
    if u < 9: return 7 + u
    if u < 32: return u + 7
    if u < 39: return u - 32
    if u < 48: return 7 + (u - 39)
    return 16 + (u - 48)
RED_WO, RED_W2 = 32768, 106496
PERS = 159744
L_CONST = PERS
L_XWQ = PERS + 512
L_XW1 = PERS + 1024
L_MODE = PERS + 2048
LDS_TOTAL = 163840

WS_FLAGS = 0x0
WS_KVF = 0x10000
WS_ST = 0x80000
WS_STAMP = 0x200000
WS_XF = 0x400000
WS_X1 = 0x600000
WS_OF = 0xA00000
WS_KV = 0xE00000
WS_HF = 0x1600000
HF_L = 0x700000
FL1, FL2, FL3, FL4 = 0, 1024, 1536, 2048

S_LAY, S_C, S_P, S_W, S_FAST = "s3", "s4", "s5", "s6", "s7"
SRD_X, SRD_WQKV, SRD_WO, SRD_W1, SRD_W2, SRD_WS, SRD_OUT, SRD_T = (
    "s[8:11]", "s[12:15]", "s[16:19]", "s[20:23]", "s[24:27]", "s[28:31]", "s[32:35]", "s[36:39]")
S_B2, S_B1, S_DBG = (40, 41), (42, 43), (44, 45)
S_EPOCH = "s46"
S_FLB = "s47"
MASK0 = 48
T = [f"s{i}" for i in range(80, 100)]
S_ONES = "s100"
S_H = "s101"

POLL_LIMIT = 100000
CODE_SHARE = 1280

class Q:
    def __init__(self, maxn):
        self.n = 0; self.tags = {}; self.maxn = maxn
    def issue(self, tag=None):
        self.n += 1
        if tag is not None: self.tags[tag] = self.n
    def cnt(self, tag):
        return min(self.n - self.tags[tag], self.maxn)
    def reset(self):
        self.n = 0; self.tags = {}

def ramp(total, n0, nmax, per=2):
    init = list(range(min(n0, total)))
    nxt = len(init)
    sched = []
    for i in range(total):
        cur = []
        depth = min(nmax, n0 + (per - 1) * (i + 1))
        while nxt < total and nxt <= i + depth:
            cur.append(nxt); nxt += 1
        sched.append(cur)
    return init, sched

def vr(a, n=4):
    return f"v[{a}:{a+n-1}]"

class Gen:
    def __init__(self, stop=None, stamps=False, force_slow=False, nlayers=2, params=None):
        self.e = Emit()
        self.stop = stop
        self.stamps = stamps
        self.force_slow = force_slow
        self.nlayers = nlayers
        self.nstamp = 0
        self.deferred = []
        self.P = params or {}
    def stamp(self, idx):
        if not self.stamps: return
        e = self.e
        e(f"s_memtime s[98:99]")
        e(f"s_lshl_b32 s97, {S_LAY}, 5")
        e(f"s_add_u32 m0, s97, {idx}")
        e(f"s_waitcnt lgkmcnt(0)")
        e(f"v_writelane_b32 v11, s98, m0")
    def srd(self, dst, lo, hi, size):
        e = self.e
        d = int(dst[2:dst.index(":")])
        e(f"s_mov_b32 s{d}, s{lo}")
        e(f"s_and_b32 s{d+1}, s{hi}, 0xffff")
        e(f"s_mov_b32 s{d+2}, {size}")
        e(f"s_mov_b32 s{d+3}, 0x20000")
    def barrier(self, name=""):
        self.e(f"s_barrier ; {name}")
    def poll(self, s_addr, voff, vtmp, nm):
        e = self.e
        l0, l1 = e.label("POLL"), e.label("POLLOK")
        cnt = T[19]
        e(f"s_mov_b32 {cnt}, 0")
        e(f"{l0}:")
        e(f"buffer_load_dword v{vtmp}, v{voff}, {SRD_WS}, {s_addr} offen sc1")
        e(f"s_add_u32 {cnt}, {cnt}, 1")
        e(f"s_cmp_gt_u32 {cnt}, {POLL_LIMIT}")
        e(f"s_cbranch_scc1 L_BAIL")
        e(f"s_waitcnt vmcnt(0)")
        e(f"v_cmp_gt_u32 vcc, {S_EPOCH}, v{vtmp}")
        e(f"s_cbranch_vccnz {l0}")
        e(f"{l1}:")
    def store_mode(self, text):
        e = self.e
        if isinstance(text, str): text = [text]
        if self.force_slow:
            for t in text: e(t + " sc1")
            return
        ls, ld = e.label("SLOW"), e.label("SDONE")
        e(f"s_cmp_eq_u32 {S_FAST}, 0")
        e(f"s_cbranch_scc1 {ls}")
        for t in text: e(t)
        e(f"s_branch {ld}")
        e(f"{ls}:")
        for t in text: e(t + " sc1")
        e(f"{ld}:")
    def flag_store(self, s_addr, vt, always_sc1=False):
        e = self.e
        e(f"v_mov_b32 v{vt}, {S_EPOCH}")
        e(f"s_mov_b64 exec, 1")
        t = f"buffer_store_dword v{vt}, off, {SRD_WS}, {s_addr}"
        if always_sc1: e(t + " sc1")
        else: self.store_mode(t)
        e(f"s_mov_b64 exec, -1")
    def dma_loop(self, srd, voff, s_soff, soff_stride, s_lds, lds_stride, count, flags=""):
        e = self.e
        if count <= 0: return
        lp = e.label("DMA")
        c = T[18]
        e(f"s_mov_b32 {c}, {count}")
        e(f"{lp}:")
        e(f"s_mov_b32 m0, {s_lds}")
        e(f"s_add_u32 {s_lds}, {s_lds}, {lds_stride}")
        e(f"buffer_load_dwordx4 v{voff}, {srd}, {s_soff} offen {flags} lds")
        e(f"s_add_u32 {s_soff}, {s_soff}, {soff_stride}")
        e(f"s_sub_u32 {c}, {c}, 1")
        e(f"s_cmp_lg_u32 {c}, 0")
        e(f"s_cbranch_scc1 {lp}")
    def check_stop(self, name, lay=None):
        if self.stop is None or self.stop[0] != name: return
        e = self.e
        e(f"s_cmp_eq_u32 {S_LAY}, {self.stop[1]}")
        e(f"s_cbranch_scc1 L_END")

    def prologue(self):
        e = self.e
        e(f"""
        s_cmp_ge_u32 s2, 256
        s_cbranch_scc1 L_END
        {"s_memrealtime s[94:95]" if self.P.get("rtprobe", 0) else ""}
        s_load_dwordx16 s[64:79], s[0:1], 0
        s_load_dwordx4 s[80:83], s[0:1], 64
        s_load_dwordx2 s[84:85], s[0:1], 80
        v_lshrrev_b32 v1, 6, v0
        v_and_b32 v0, 63, v0
        v_readfirstlane_b32 {S_W}, v1
        s_and_b32 {S_C}, s2, 7
        s_lshl_b32 {S_C}, {S_C}, 1
        s_lshr_b32 {S_P}, s2, 3
        s_lshr_b32 s46, {S_P}, 4
        s_add_u32 {S_C}, {S_C}, s46
        s_and_b32 {S_P}, {S_P}, 15
        s_mov_b32 {S_LAY}, 0
        s_mov_b32 {S_EPOCH}, 1
        s_mov_b32 {S_FAST}, 0
        s_lshl_b32 {S_FLB}, {S_C}, 12
        s_mov_b32 {S_ONES}, 0x3f803f80
        v_lshlrev_b32 v1, 4, v0
        v_and_b32 v10, 15, v0
        v_lshlrev_b32 v10, 2, v10
        v_mov_b32 v11, 0
        """)
        for r in list(range(2, 10)) + list(range(22, 28)):
            e(f"v_mov_b32 v{r}, 0")
        e("s_waitcnt lgkmcnt(0)")
        if self.P.get("rtprobe", 0):
            e("s_memrealtime s[92:93]")
            e("s_waitcnt lgkmcnt(0)")
            e("v_writelane_b32 v11, s94, 20")
            e("v_writelane_b32 v11, s92, 23")
        if self.P.get("calibrt", 0):
            e("s_memrealtime s[0:1]")
            e("s_waitcnt lgkmcnt(0)")
        self.srd(SRD_X, 64, 65, 2048 * 512 * 2)
        z = 0 if self.P.get("nowt", 0) else 1
        self.srd(SRD_WQKV, 66, 67, 512 * 1536 * 2 * z)
        self.srd(SRD_WO, 68, 69, 512 * 512 * 2 * z)
        self.srd(SRD_W1, 72, 73, 512 * 1792 * 2 * z)
        self.srd(SRD_W2, 76, 77, 1792 * 512 * 2 * z)
        self.srd(SRD_WS, 84, 85, 0x10000000)
        self.srd(SRD_OUT, 80, 81, 2048 * 512 * 2)
        e(f"""
        s_mov_b32 s{S_B2[0]}, s78
        s_mov_b32 s{S_B2[1]}, s79
        s_mov_b32 s{S_B1[0]}, s74
        s_mov_b32 s{S_B1[1]}, s75
        s_mov_b32 s{S_DBG[0]}, s82
        s_mov_b32 s{S_DBG[1]}, s83
        """)
        e(f"""
        v_and_b32 v2, 31, v0
        v_lshrrev_b32 v3, 5, v0
        v_lshlrev_b32 v3, 2, v3
        v_sub_u32 v2, v2, v3
        """)
        for r in range(16):
            k = (r & 3) + 8 * (r >> 2)
            e(f"v_cmp_le_i32 s[{MASK0+2*r}:{MASK0+2*r+1}], {k}, v2")
        e(f"s_cmp_ge_u32 {S_W}, 4")
        e(f"s_cbranch_scc1 L_HELPER")

    def stats_finalize(self, vS, vQ, t0, out_pm, out_ps, out_rstd):
        e = self.e
        a, b, c_, d = t0, t0 + 1, t0 + 2, t0 + 3
        e(f"v_mov_b32 v{a}, v{vS}")
        e(f"v_mov_b32 v{b}, v{vQ}")
        e(f"v_permlane32_swap_b32 v{vS}, v{a}")
        e(f"v_permlane32_swap_b32 v{vQ}, v{b}")
        e(f"v_add_f32 v{vS}, v{vS}, v{a}")
        e(f"v_add_f32 v{vQ}, v{vQ}, v{b}")
        e(f"v_mul_f32 v{vS}, 0x3b000000, v{vS}")
        e(f"v_mul_f32 v{vQ}, 0x3b000000, v{vQ}")
        e(f"v_fma_f32 v{vQ}, -v{vS}, v{vS}, v{vQ}")
        e(f"v_max_f32 v{vQ}, 0, v{vQ}")
        e(f"v_cvt_pk_bf16_f32 v{out_pm}, v{vS}, v{vS}")
        e(f"v_cvt_pk_bf16_f32 v{a}, v{vQ}, v{vQ}")
        e(f"v_lshlrev_b32 v{a}, 16, v{a}")
        e(f"v_add_f32 v{a}, 0x3727c5ac, v{a}")
        e(f"v_cvt_pk_bf16_f32 v{a}, v{a}, v{a}")
        e(f"v_lshlrev_b32 v{a}, 16, v{a}")
        e(f"v_sqrt_f32 v{a}, v{a}")
        e(f"v_cvt_pk_bf16_f32 v{out_ps}, v{a}, v{a}")
        e(f"v_lshlrev_b32 v{a}, 16, v{out_ps}")
        e(f"v_rcp_f32 v{out_rstd}, v{a}")

    def sum_partials(self, base, vS, vQ):
        e = self.e
        b = base
        e(f"v_pk_add_f32 v[{b}:{b+1}], v[{b}:{b+1}], v[{b+2}:{b+3}]")
        e(f"v_pk_add_f32 v[{b+4}:{b+5}], v[{b+4}:{b+5}], v[{b+6}:{b+7}]")
        e(f"v_pk_add_f32 v[{b+8}:{b+9}], v[{b+8}:{b+9}], v[{b+10}:{b+11}]")
        e(f"v_pk_add_f32 v[{b+12}:{b+13}], v[{b+12}:{b+13}], v[{b+14}:{b+15}]")
        e(f"v_pk_add_f32 v[{b}:{b+1}], v[{b}:{b+1}], v[{b+4}:{b+5}]")
        e(f"v_pk_add_f32 v[{b+8}:{b+9}], v[{b+8}:{b+9}], v[{b+12}:{b+13}]")
        e(f"v_pk_add_f32 v[{b}:{b+1}], v[{b}:{b+1}], v[{b+8}:{b+9}]")
        assert vS == b and vQ == b + 1

    def compute(self):
        e = self.e
        if self.stamps:
            e(f"s_memrealtime s[98:99]")
            e(f"s_waitcnt lgkmcnt(0)")
            e(f"v_writelane_b32 v11, s98, 31")
        e("L_CLAYER:")
        self.stamp(0)
        self.qkv_compute()
        self.check_stop("qkv")
        self.attention()
        self.check_stop("attn")
        self.wo_compute()
        self.check_stop("wo")
        self.w1_compute()
        self.check_stop("w1")
        self.w2_compute()
        self.check_stop("w2")
        e(f"s_add_u32 {S_LAY}, {S_LAY}, 1")
        e(f"s_add_u32 {S_EPOCH}, {S_EPOCH}, 1")
        e(f"s_cmp_lt_u32 {S_LAY}, {self.nlayers}")
        e(f"s_cbranch_scc1 L_CLAYER")
        e(f"s_branch L_END")

    def resid_load(self):
        e = self.e
        t0, t1, t2 = T[0], T[1], T[2]
        e(f"""
        s_lshr_b32 {t0}, {S_P}, 3
        s_lshl_b32 {t0}, {t0}, 6
        s_and_b32 {t1}, {S_W}, 1
        s_lshl_b32 {t1}, {t1}, 5
        s_add_u32 {t0}, {t0}, {t1}
        s_lshl_b32 {t1}, {S_C}, 7
        s_add_u32 {t0}, {t0}, {t1}
        s_lshl_b32 {t0}, {t0}, 10
        s_and_b32 {t1}, {S_P}, 7
        s_lshl_b32 {t1}, {t1}, 7            ; 64j*2
        s_add_u32 {t0}, {t0}, {t1}
        s_lshr_b32 {t1}, {S_W}, 1
        s_lshl_b32 {t1}, {t1}, 6            ; 32kh*2
        s_add_u32 {t0}, {t0}, {t1}
        v_and_b32 v46, 31, v0
        v_lshlrev_b32 v46, 10, v46
        v_lshrrev_b32 v47, 5, v0
        v_lshlrev_b32 v47, 3, v47
        v_add_u32 v46, v46, v47
        """)
        for q in range(4):
            e(f"buffer_load_dwordx2 v[{2+2*q}:{3+2*q}], v46, {SRD_X}, {t0} offen offset:{16*q}")

    def qkv_compute(self):
        e = self.e
        ACT = 128; accK, accV, accQ = 80, 96, 112; RING = 48
        A1, A2, A1Q, A2Q = 12, 13, 14, 15
        t0, t1, t2, t3 = T[0], T[1], T[2], T[3]
        TG = T[6]
        NPRE = self.P.get('qkv_pre', 12)
        e(f"""
        v_and_b32 v16, 15, v0
        v_lshrrev_b32 v16, 2, v16
        v_lshlrev_b32 v16, 6, v16
        v_lshrrev_b32 v17, 4, v0
        v_and_b32 v17, 1, v17
        v_lshlrev_b32 v17, 5, v17
        v_add_u32 v16, v16, v17
        v_and_b32 v17, 3, v0
        v_lshlrev_b32 v17, 3, v17
        v_add_u32 v16, v16, v17
        v_lshrrev_b32 v17, 5, v0
        s_movk_i32 {t2}, 256
        s_movk_i32 {t3}, 512
        s_cmp_eq_u32 {S_LAY}, 0
        s_cselect_b32 {t0}, {t3}, {t2}
        s_cselect_b32 {t1}, {t2}, {t3}
        v_mul_lo_u32 v17, v17, {t0}
        v_add_u32 v{A1}, v16, v17
        v_add_u32 v{A2}, {t1}, v{A1}
        v_add_u32 v{A1Q}, 0x10000, v{A1}
        v_add_u32 v{A2Q}, 0x10000, v{A2}
        v_and_b32 v44, 31, v0
        v_lshlrev_b32 v44, 2, v44
        v_add_u32 v44, {L_XWQ}, v44
        """)
        lx, ld = e.label("QX"), e.label("QLD")
        e(f"s_lshl_b32 {TG}, {S_C}, 2")
        e(f"s_add_u32 {TG}, {TG}, {S_W}          ; tg")
        e(f"s_cmp_eq_u32 {S_LAY}, 0")
        e(f"s_cbranch_scc1 {lx}")
        e(f"s_lshl_b32 {t0}, {S_W}, 7")
        e(f"s_add_u32 {t0}, {t0}, {S_FLB}")
        e(f"s_add_u32 {t0}, {t0}, {WS_FLAGS + FL4}")
        e(f"s_sub_u32 {S_EPOCH}, {S_EPOCH}, 1")
        self.poll(t0, 10, 16, "FL4")
        e(f"s_add_u32 {S_EPOCH}, {S_EPOCH}, 1")
        self.stamp(1)
        SA = T[5]
        e(f"s_lshl_b32 {SA}, {TG}, 15")
        e(f"s_add_u32 {SA}, {SA}, {WS_XF}")
        vq = Q(63)
        def ld_act(s):
            e(f"buffer_load_dwordx4 {vr(ACT+4*s)}, v1, {SRD_WS}, {SA} offen offset:{(s&3)*1024} sc1"); vq.issue(s)
            if (s & 3) == 3 and s < 31:
                e(f"s_add_u32 {SA}, {SA}, 4096")
        q_init, q_sched = ramp(32, self.P.get('qkv_n0', 12), NPRE)
        for s in q_init: ld_act(s)
        e(f"s_lshl_b32 {T[4]}, {TG}, 12")
        e(f"s_add_u32 {T[4]}, {T[4]}, {WS_ST + 0x40000}")
        def ld_stats():
            for u in range(4):
                e(f"buffer_load_dwordx4 {vr(16+4*u)}, v1, {SRD_WS}, {T[4]} offen offset:{u*1024} sc1"); vq.issue(("st", u))
        e(f"s_mov_b64 vcc, 0")
        e(f"s_branch {ld}")
        e(f"{lx}:")
        STG = L_KBUF
        e(f"""
        v_lshrrev_b32 v16, 3, v0
        v_lshlrev_b32 v17, 10, v16
        v_and_b32 v18, 7, v0
        v_lshlrev_b32 v19, 4, v18
        v_add_u32 v20, v17, v19
        s_lshl_b32 {t0}, {TG}, 15
        s_add_u32 {t1}, {t0}, 8192
        s_add_u32 {t2}, {t0}, 16384
        s_add_u32 {t3}, {t0}, 24576
        """)
        for ch in range(8):
            for rb, sr in enumerate((t0, t1, t2, t3)):
                e(f"buffer_load_dwordx4 {vr(ACT+16*ch+4*rb)}, v20, {SRD_X}, {sr} offen offset:{128*ch}")
        e(f"""
        v_lshrrev_b32 v17, 4, v0
        v_xor_b32 v17, v17, v18
        v_lshlrev_b32 v17, 4, v17
        v_lshlrev_b32 v16, 7, v16
        v_add_u32 v16, v16, v17
        s_lshl_b32 {t0}, {S_W}, 12
        s_add_u32 {t0}, {t0}, {STG}
        v_add_u32 v21, {t0}, v16
        v_xor_b32 v22, 64, v21
        v_and_b32 v16, 31, v0
        v_lshrrev_b32 v17, 1, v16
        v_and_b32 v17, 7, v17
        v_lshrrev_b32 v18, 5, v0
        v_xor_b32 v17, v17, v18
        v_lshlrev_b32 v17, 4, v17
        v_lshlrev_b32 v16, 7, v16
        v_add_u32 v16, v16, v17
        v_add_u32 v23, {t0}, v16
        v_xor_b32 v24, 32, v23
        v_xor_b32 v25, 64, v23
        v_xor_b32 v26, 96, v23
        """)
        for r in range(16, 20):
            e(f"v_mov_b32 v{r}, 0")
        def dots(ch):
            for i in range(16):
                e(f"v_dot2c_f32_bf16 v{16+(i&1)}, {S_ONES}, v{ACT+16*ch+i}")
                e(f"v_dot2c_f32_bf16 v{18+(i&1)}, v{ACT+16*ch+i}, v{ACT+16*ch+i}")
        for ch in range(8):
            e(f"s_waitcnt vmcnt({28-4*ch})")
            for rb in range(4):
                e(f"ds_write_b128 v{21+(rb&1)}, {vr(ACT+16*ch+4*rb)} offset:{rb*1024}")
            for sp in range(4):
                e(f"ds_read_b128 {vr(ACT+16*ch+4*sp)}, v{23+sp}")
            if ch > 0:
                e(f"s_waitcnt lgkmcnt(8)")
                dots(ch - 1)
        e(f"s_waitcnt lgkmcnt(0)")
        dots(7)
        e(f"s_mov_b64 vcc, -1")
        e(f"{ld}:")
        self.stamp(15)
        lg = Q(15)
        def rd_kv(s):
            sl = RING + 8 * (s % 4)
            for t, off in ((0, 0), (1, 32768)):
                e(f"ds_read_b64_tr_b16 v[{sl+4*t}:{sl+4*t+1}], v{A1} offset:{off + s*1024}"); lg.issue()
                e(f"ds_read_b64_tr_b16 v[{sl+4*t+2}:{sl+4*t+3}], v{A2} offset:{off + s*1024}"); lg.issue((s, t))
        PM, PS, RSTD = 28, 29, 30
        outl = []
        self.barrier("Q0")
        self.stamp(16)
        for s in range(3): rd_kv(s)
        for s in range(32):
            sl = RING + 8 * (s % 4)
            if s + 3 < 32 and (s + 3) % 8 == 0:
                self.barrier(f"Q{(s+3)//8}")
            e(f"s_waitcnt vmcnt({vq.cnt(s)}) lgkmcnt({lg.cnt((s,1))})")
            c = "0" if s == 0 else vr(accK, 16)
            e(f"v_mfma_f32_32x32x16_bf16 {vr(accK,16)}, {vr(sl)}, {vr(ACT+4*s)}, {c}")
            if s + 3 < 32: rd_kv(s + 3)
            c = "0" if s == 0 else vr(accV, 16)
            e(f"v_mfma_f32_32x32x16_bf16 {vr(accV,16)}, {vr(sl+4)}, {vr(ACT+4*s)}, {c}")
            if q_sched[s] or s == 12:
                lb = e.label("DOTB")
                e(f"s_cbranch_vccnz {lb}")
                for x in q_sched[s]: ld_act(x)
                if s == 12: ld_stats()
                e(f"{lb}:")
        self.barrier("Q4")
        self.stamp(2)
        lg.reset()
        def rd_q(s):
            sl = RING + 4 * (s % 8)
            e(f"ds_read_b64_tr_b16 v[{sl}:{sl+1}], v{A1Q} offset:{s*1024}"); lg.issue()
            e(f"ds_read_b64_tr_b16 v[{sl+2}:{sl+3}], v{A2Q} offset:{s*1024}"); lg.issue(("q", s))
        XA, XB, EB = 32, 36, 40
        e(f"ds_read_b32 v{XA}, v44"); lg.issue("xk")
        e(f"ds_read_b32 v{XB}, v44 offset:128"); lg.issue("xv")
        for s in range(5): rd_q(s)
        l0, l1 = e.label("ST0"), e.label("ST1")
        e(f"s_cmp_eq_u32 {S_LAY}, 0")
        e(f"s_cbranch_scc1 {l0}")
        self.sum_partials(16, 16, 17)
        e(f"s_branch {l1}")
        e(f"{l0}:")
        e(f"s_nop 3")
        e(f"v_add_f32 v16, v16, v17")
        e(f"v_add_f32 v17, v18, v19")
        e(f"{l1}:")
        self.stats_finalize(16, 17, 20, PM, PS, RSTD)
        for r in (XA+1, XA+2, XA+3, XB+1, XB+2, XB+3, EB+1, EB+2, EB+3):
            e(f"v_mov_b32 v{r}, 0")
        e(f"v_cmp_gt_u32 vcc, 32, v0")
        e(f"v_cndmask_b32 v{EB}, 0, v{PM}, vcc")
        e(f"s_waitcnt lgkmcnt({lg.cnt('xv')})")
        e(f"v_mfma_f32_32x32x16_bf16 {vr(accK,16)}, {vr(XA)}, {vr(EB)}, {vr(accK,16)}")
        e(f"v_mfma_f32_32x32x16_bf16 {vr(accV,16)}, {vr(XB)}, {vr(EB)}, {vr(accV,16)}")
        e(f"s_lshl_b32 {t0}, {S_W}, 10")
        e(f"s_add_u32 {t0}, {t0}, {L_KBUF + 8*1024}")
        e(f"v_add_u32 v45, {t0}, v1")
        e(f"s_lshl_b32 {t0}, {TG}, 16")
        e(f"s_lshl_b32 {t1}, {S_P}, 12")
        e(f"s_add_u32 {t0}, {t0}, {t1}")
        e(f"s_lshl_b32 {t1}, {S_LAY}, 22")
        e(f"s_add_u32 {t0}, {t0}, {t1}")
        e(f"s_add_u32 {t0}, {t0}, {WS_KV}")
        PK = 68
        for kv, acc, lbuf in ((0, accK, 0), (1, accV, L_VBUF - L_KBUF)):
            for i in range(8):
                e(f"v_pk_mul_f32 v[{acc+2*i}:{acc+2*i+1}], v[{acc+2*i}:{acc+2*i+1}], v[{RSTD}:{RSTD+1}] op_sel_hi:[1,0]")
            for i in range(8):
                e(f"v_cvt_pk_bf16_f32 v{PK+i}, v{acc+2*i}, v{acc+2*i+1}")
            for hd in range(2):
                e(f"buffer_store_dwordx4 {vr(PK+4*hd)}, v1, {SRD_WS}, {t0} offen offset:{hd*2048 + kv*1024} sc1")
                e(f"ds_write_b128 v45, {vr(PK+4*hd)} offset:{lbuf + hd*12288}"); lg.issue()
        self.stamp(17)
        e(f"s_lshl_b32 {t0}, {S_C}, 4")
        e(f"s_add_u32 {t0}, {t0}, {S_P}")
        e(f"s_lshl_b32 {t0}, {t0}, 2")
        e(f"s_add_u32 {t0}, {t0}, {S_W}")
        e(f"s_lshl_b32 {t0}, {t0}, 8")
        e(f"s_add_u32 {t0}, {t0}, {WS_KVF}")
        for s in range(5, 7): rd_q(s)
        for s in range(32):
            sl = RING + 4 * (s % 8)
            e(f"s_waitcnt lgkmcnt({lg.cnt(('q', s))})")
            c = "0" if s == 0 else vr(accQ, 16)
            e(f"v_mfma_f32_32x32x16_bf16 {vr(accQ,16)}, {vr(sl)}, {vr(ACT+4*s)}, {c}")
            if s + 7 < 32: rd_q(s + 7)
            if s == 27:
                e(f"s_waitcnt vmcnt(0)")
                self.flag_store(t0, 22, always_sc1=True)
        self.barrier("Q5")
        self.stamp(3)
        lres = e.label("RES")
        e(f"s_cmp_eq_u32 {S_LAY}, 0")
        e(f"s_cbranch_scc0 {lres}")
        self.resid_load()
        e(f"{lres}:")
        e(f"ds_read_b32 v{XA}, v44 offset:256")
        e(f"v_mul_f32 v{RSTD}, 0x3eb8aa3b, v{RSTD}")
        e(f"s_lshl_b32 {t0}, {S_W}, 10")
        e(f"s_add_u32 {t0}, {t0}, {L_QBUF}")
        e(f"v_add_u32 v45, {t0}, v1")
        e(f"s_waitcnt lgkmcnt(0)")
        e(f"v_mfma_f32_32x32x16_bf16 {vr(accQ,16)}, {vr(XA)}, {vr(EB)}, {vr(accQ,16)}")
        for i in range(8):
            e(f"v_pk_mul_f32 v[{accQ+2*i}:{accQ+2*i+1}], v[{accQ+2*i}:{accQ+2*i+1}], v[{RSTD}:{RSTD+1}] op_sel_hi:[1,0]")
        for i in range(8):
            e(f"v_cvt_pk_bf16_f32 v{PK+i}, v{accQ+2*i}, v{accQ+2*i+1}")
        for hd in range(2):
            e(f"ds_write_b128 v45, {vr(PK+4*hd)} offset:{hd*4096}")
        e(f"s_waitcnt lgkmcnt(0)")
        self.barrier("B_c")
        self.stamp(4)
        self.deferred.append(("qkvdot", outl, ACT))

    def attention(self):
        e = self.e
        S0 = 64
        KF = 208
        QF = 244
        OA = 32
        PP = 48
        AK, AV, VST, MX, TM = 12, 13, 14, 15, 16
        AV0, AQ = 22, 23
        NM = 20
        t0, t1, t2, t3 = T[0], T[1], T[2], T[3]
        NSK, HD, SO = T[4], T[8], T[9]
        e(f"v_mov_b32 v16, {L_MODE}")
        e(f"ds_read_b32 v17, v16")
        e(f"s_lshl_b32 {t3}, {S_W}, 10")
        e(f"s_add_u32 {t2}, {t3}, {L_KBUF}")
        e(f"v_add_u32 v{AK}, {t2}, v1")
        e(f"s_add_u32 {t2}, {t3}, {L_QBUF}")
        e(f"v_add_u32 v{AQ}, {t2}, v1")
        e(f"s_lshl_b32 {t2}, {S_C}, 2")
        e(f"s_add_u32 {t2}, {t2}, {S_W}")
        e(f"s_sub_i32 {NSK}, 8, {t2}")
        e(f"s_max_i32 {NSK}, {NSK}, 0")
        e(f"s_lshl_b32 {SO}, {t2}, 15")
        e(f"s_lshl_b32 {t2}, {S_P}, 11")
        e(f"s_add_u32 {SO}, {SO}, {t2}")
        e(f"s_lshl_b32 {t2}, {S_LAY}, 21")
        e(f"s_add_u32 {SO}, {SO}, {t2}")
        e(f"s_add_u32 {SO}, {SO}, {WS_OF}")
        e(f"""
        v_and_b32 v18, 1, v0
        v_lshlrev_b32 v18, 9, v18
        v_lshrrev_b32 v19, 5, v0
        v_lshlrev_b32 v19, 2, v19
        v_and_b32 v20, 15, v0
        v_lshrrev_b32 v20, 2, v20
        v_add_u32 v19, v19, v20
        v_lshlrev_b32 v19, 4, v19
        v_add_u32 v18, v18, v19
        v_lshrrev_b32 v19, 1, v0
        v_and_b32 v19, 1, v19
        v_lshlrev_b32 v19, 3, v19
        v_add_u32 v18, v18, v19
        s_add_u32 {t3}, {t3}, {L_VBUF}
        v_add_u32 v18, {t3}, v18
        v_add_u32 v19, {L_CONST}, v19
        v_and_b32 v20, 16, v0
        v_cmp_eq_u32 vcc, 0, v20
        v_mov_b32 v21, 1024
        v_cndmask_b32 v{AV0}, v19, v18, vcc
        v_cndmask_b32 v{VST}, 0, v21, vcc
        s_mov_b32 {HD}, 0
        s_waitcnt lgkmcnt(0)
        v_readfirstlane_b32 {S_FAST}, v17
        """)
        e("L_UNIT:")
        order_s = [0, 8, 1, 2, 3, 4, 5, 6, 7]
        kreg = {t: KF + 4 * n for n, t in enumerate(order_s)}
        S8, Sf = S0 + 128, S0
        lg = Q(15)
        e(f"ds_read_b128 {vr(QF)}, v{AQ}"); lg.issue("q")
        for t in order_s:
            e(f"ds_read_b128 {vr(kreg[t])}, v{AK} offset:{t*1024}"); lg.issue(("k", t))
        e(f"v_add_u32 v{AV}, v{AV0}, v{VST}")
        def rd_v(slot, tag):
            b = KF + 8 * slot
            for half in range(2):
                e(f"ds_read_b64_tr_b16 v[{b+4*half}:{b+4*half+1}], v{AV} offset:{half*256}"); lg.issue()
                e(f"ds_read_b64_tr_b16 v[{b+4*half+2}:{b+4*half+3}], v{AV} offset:{half*256+128}"); lg.issue((tag, half))
        ch = [MX, TM, TM + 1, TM + 2]
        def merge():
            for r in range(16):
                e(f"v_cndmask_b32 v{S8+r}, v{Sf+r}, v{S8+r}, s[{MASK0+2*r}:{MASK0+2*r+1}]")
        first = [True] * 4
        def maxt(t, c4):
            b = S0 + 16 * t
            k = 0
            if first[c4]:
                e(f"v_max3_f32 v{ch[c4]}, v{b}, v{b+1}, v{b+2}"); e(f"v_max_f32 v{ch[c4]}, v{ch[c4]}, v{b+3}"); k = 4
                first[c4] = False
            while k < 16:
                e(f"v_max3_f32 v{ch[c4]}, v{ch[c4]}, v{b+k}, v{b+k+1}"); k += 2
        lgen, ljoin = e.label("SGEN"), e.label("SJOIN")
        e(f"s_cmp_lg_u32 {NSK}, 0")
        e(f"s_cbranch_scc1 {lgen}")
        post = {2: merge, 3: lambda: maxt(8, 0), 4: lambda: maxt(1, 1), 5: lambda: maxt(2, 2), 6: lambda: maxt(3, 3), 7: lambda: maxt(4, 0)}
        for n, t in enumerate(order_s):
            e(f"s_waitcnt lgkmcnt({lg.cnt(('k', t))})")
            e(f"v_mfma_f32_32x32x16_bf16 {vr(S0+16*t,16)}, {vr(kreg[t])}, {vr(QF)}, 0")
            if t in post: post[t]()
        maxt(5, 1); maxt(6, 2); maxt(7, 3)
        e(f"s_branch {ljoin}")
        e(f"{lgen}:")
        e(f"s_waitcnt lgkmcnt(0)")
        for t in order_s:
            e(f"v_mfma_f32_32x32x16_bf16 {vr(S0+16*t,16)}, {vr(kreg[t])}, {vr(QF)}, 0")
        e(f"s_nop 7"); e(f"s_nop 7")
        for t in range(8):
            lk = e.label("SINV")
            e(f"s_cmp_gt_i32 {NSK}, {t}")
            e(f"s_cbranch_scc0 {lk}")
            for r in range(16):
                e(f"v_mov_b32 v{S0+16*t+r}, 0xff800000")
            e(f"{lk}:")
        merge()
        first = [True] * 4
        for t, c4 in ((8, 0), (1, 1), (2, 2), (3, 3), (4, 0), (5, 1), (6, 2), (7, 3)):
            maxt(t, c4)
        e(f"{ljoin}:")
        lg = Q(15)
        rd_v(0, 1)
        e(f"v_add_u32 v{AV}, v{AV}, v{VST}")
        rd_v(1, 2)
        e(f"v_max3_f32 v{MX}, v{MX}, v{TM}, v{TM+1}")
        e(f"v_max_f32 v{MX}, v{MX}, v{TM+2}")
        e(f"v_mov_b32 v{TM}, v{MX}")
        e(f"v_permlane32_swap_b32 v{MX}, v{TM}")
        e(f"v_max_f32 v{MX}, v{MX}, v{TM}")
        e(f"v_sub_f32 v{NM}, 0, v{MX}")
        self.stamp(21)
        order = [1, 2, 3, 4, 5, 6, 7, 8]
        for n, i in enumerate(order):
            Sb = S0 + 16 * i
            for r in range(8):
                e(f"v_pk_add_f32 v[{Sb+2*r}:{Sb+2*r+1}], v[{Sb+2*r}:{Sb+2*r+1}], v[{NM}:{NM+1}] op_sel_hi:[1,0]")
            for r in range(16):
                e(f"v_exp_f32 v{Sb+r}, v{Sb+r}")
            P = PP + 8 * (n & 1)
            if i == 8:
                for r in range(16):
                    m = f"s[{MASK0+2*r}:{MASK0+2*r+1}]"
                    e(f"v_cndmask_b32 v{Sf+r}, v{Sb+r}, 0, {m}")
                    e(f"v_cndmask_b32 v{Sb+r}, 0, v{Sb+r}, {m}")
            for r in range(8):
                e(f"v_cvt_pk_bf16_f32 v{P+r}, v{Sb+2*r}, v{Sb+2*r+1}")
            b = KF + 8 * (n % 3)
            e(f"s_waitcnt lgkmcnt({lg.cnt((i,1))})")
            c = "0" if n == 0 else vr(OA, 16)
            e(f"v_mfma_f32_32x32x16_bf16 {vr(OA,16)}, {vr(b)}, {vr(P)}, {c}")
            e(f"v_mfma_f32_32x32x16_bf16 {vr(OA,16)}, {vr(b+4)}, {vr(P+4)}, {vr(OA,16)}")
            nn = n + 2
            if nn < len(order):
                e(f"v_add_u32 v{AV}, v{AV}, v{VST}")
                rd_v(nn % 3, order[nn])
            elif nn == len(order):
                e(f"v_mov_b32 v{AV}, v{AV0}")
                rd_v(nn % 3, 0)
        P = PP
        for r in range(8):
            e(f"v_cvt_pk_bf16_f32 v{P+r}, v{Sf+2*r}, v{Sf+2*r+1}")
        b = KF + 8 * (len(order) % 3)
        e(f"s_waitcnt lgkmcnt(0)")
        e(f"v_mfma_f32_32x32x16_bf16 {vr(OA,16)}, {vr(b)}, {vr(P)}, {vr(OA,16)}")
        e(f"v_mfma_f32_32x32x16_bf16 {vr(OA,16)}, {vr(b+4)}, {vr(P+4)}, {vr(OA,16)}")
        e(f"v_add_u32 v{AK}, 12288, v{AK}")
        e(f"v_add_u32 v{AQ}, 4096, v{AQ}")
        e(f"v_mul_u32_u24 v{TM}, 12, v{VST}")
        e(f"v_add_u32 v{AV0}, v{AV0}, v{TM}")
        e(f"v_rcp_f32 v{TM}, v{OA+8}")
        for i in range(4):
            e(f"v_pk_mul_f32 v[{OA+2*i}:{OA+2*i+1}], v[{OA+2*i}:{OA+2*i+1}], v[{TM}:{TM+1}] op_sel_hi:[1,0]")
        for i in range(4):
            e(f"v_cvt_pk_bf16_f32 v{PP+i}, v{OA+2*i}, v{OA+2*i+1}")
        self.store_mode(f"buffer_store_dwordx4 {vr(PP)}, v1, {SRD_WS}, {SO} offen")
        e(f"s_add_u32 {SO}, {SO}, 1024")
        e(f"s_add_u32 {HD}, {HD}, 1")
        self.stamp(22)
        e(f"s_cmp_lt_u32 {HD}, 2")
        e(f"s_cbranch_scc1 L_UNIT")
        e(f"s_lshl_b32 {t0}, {S_W}, 8")
        e(f"s_lshl_b32 {t3}, {S_P}, 2")
        e(f"s_add_u32 {t0}, {t0}, {t3}")
        e(f"s_add_u32 {t0}, {t0}, {S_FLB}")
        e(f"s_add_u32 {t0}, {t0}, {WS_FLAGS + FL1}")
        e(f"s_add_u32 {t1}, {t0}, 128")
        e(f"s_waitcnt vmcnt(0)")
        e(f"v_mov_b32 v{TM}, {S_EPOCH}")
        e(f"s_mov_b64 exec, 1")
        self.store_mode([f"buffer_store_dword v{TM}, off, {SRD_WS}, {t0}", f"buffer_store_dword v{TM}, off, {SRD_WS}, {t1}"])
        e(f"s_mov_b64 exec, -1")
        self.barrier("B_d")
        self.stamp(5)

    def tile64_addr(self, akeep, asend):
        e = self.e
        t0 = T[0]
        e(f"""
        v_lshrrev_b32 v16, 5, v0
        v_lshlrev_b32 v16, 2, v16
        v_and_b32 v17, 15, v0
        v_lshrrev_b32 v17, 2, v17
        v_add_u32 v16, v16, v17
        v_lshlrev_b32 v16, 7, v16
        v_lshrrev_b32 v17, 1, v17
        s_lshr_b32 {t0}, {S_W}, 1
        v_xor_b32 v17, {t0}, v17
        v_and_b32 v17, 1, v17
        v_lshlrev_b32 v17, 6, v17
        v_add_u32 v16, v16, v17
        v_lshrrev_b32 v17, 4, v0
        v_and_b32 v17, 1, v17
        v_lshlrev_b32 v17, 5, v17
        v_add_u32 v16, v16, v17
        v_and_b32 v17, 3, v0
        v_lshlrev_b32 v17, 3, v17
        v_add_u32 v16, v16, v17
        s_lshl_b32 {t0}, {t0}, 11
        v_add_u32 v{akeep}, {t0}, v16
        v_xor_b32 v{asend}, 64, v{akeep}
        """)
    def tg64(self, dst):
        e = self.e
        e(f"s_lshr_b32 {T[7]}, {S_P}, 3")
        e(f"s_lshl_b32 {T[7]}, {T[7]}, 1")
        e(f"s_and_b32 {dst}, {S_W}, 1")
        e(f"s_add_u32 {T[7]}, {T[7]}, {dst}")
        e(f"s_lshl_b32 {dst}, {S_C}, 2")
        e(f"s_add_u32 {dst}, {dst}, {T[7]}")
    def reduce_exchange(self, red, accK, accS, tmp):
        e = self.e
        t0 = T[0]
        return
    def epilogue64(self, accK, RX, red, final_ok):
        e = self.e
        for q in range(4):
            e(f"s_waitcnt lgkmcnt({3-q})")
            for i in (2*q, 2*q+1):
                e(f"v_pk_add_f32 v[{accK+2*i}:{accK+2*i+1}], v[{accK+2*i}:{accK+2*i+1}], v[{RX+2*i}:{RX+2*i+1}]")
        for i in range(8):
            e(f"v_cvt_pk_bf16_f32 v{2+i}, v{accK+2*i}, v{accK+2*i+1}")
        e(f"v_pk_add_f32 v[{RX}:{RX+1}], v[{accK}:{accK+1}], v[{accK+2}:{accK+3}]")
        e(f"v_pk_mul_f32 v[{RX+2}:{RX+3}], v[{accK}:{accK+1}], v[{accK}:{accK+1}]")
        e(f"v_pk_fma_f32 v[{RX+2}:{RX+3}], v[{accK+2}:{accK+3}], v[{accK+2}:{accK+3}], v[{RX+2}:{RX+3}]")
        for i in range(2, 8):
            e(f"v_pk_add_f32 v[{RX}:{RX+1}], v[{RX}:{RX+1}], v[{accK+2*i}:{accK+2*i+1}]")
            e(f"v_pk_fma_f32 v[{RX+2}:{RX+3}], v[{accK+2*i}:{accK+2*i+1}], v[{accK+2*i}:{accK+2*i+1}], v[{RX+2}:{RX+3}]")
        e(f"v_add_f32 v16, v{RX}, v{RX+1}")
        e(f"v_add_f32 v17, v{RX+2}, v{RX+3}")
        e(f"v_mov_b32 v18, v16")
        e(f"v_mov_b32 v19, v17")
        e(f"v_permlane32_swap_b32 v16, v18")
        e(f"v_permlane32_swap_b32 v17, v19")
        e(f"v_add_f32 v16, v16, v18")
        e(f"v_add_f32 v17, v17, v19")
    def stats_store2(self):
        e = self.e
        e(f"s_mov_b32 exec_hi, 0")
        self.store_mode(f"buffer_store_dwordx2 v[16:17], v1, {SRD_WS}, {T[9]} offen")
        e(f"s_mov_b32 exec_hi, -1")
    def stats_store(self, tg, stbuf_sgpr):
        e = self.e
        t0, t1 = T[0], T[1]
        e(f"s_lshl_b32 {t0}, {tg}, 12")
        e(f"s_add_u32 {t0}, {t0}, {stbuf_sgpr}")
        e(f"s_and_b32 {t1}, {S_P}, 7")
        e(f"s_lshl_b32 {t1}, {t1}, 9")
        e(f"s_add_u32 {t0}, {t0}, {t1}")
        e(f"s_lshr_b32 {t1}, {S_W}, 1")
        e(f"s_lshl_b32 {t1}, {t1}, 3")
        e(f"s_add_u32 {t0}, {t0}, {t1}")
        e(f"s_mov_b32 exec_hi, 0")
        self.store_mode(f"buffer_store_dwordx2 v[16:17], v1, {SRD_WS}, {t0} offen")
        e(f"s_mov_b32 exec_hi, -1")
    def flag64(self, fl):
        e = self.e
        t0, t1 = T[0], T[1]
        e(f"s_lshl_b32 {t0}, {T[7]}, 7")
        e(f"s_and_b32 {t1}, {S_P}, 7")
        e(f"s_lshl_b32 {t1}, {t1}, 1")
        e(f"s_add_u32 {t0}, {t0}, {S_FLB}")
        e(f"s_lshl_b32 {t1}, {t1}, 2")
        e(f"s_add_u32 {t0}, {t0}, {t1}")
        e(f"s_lshr_b32 {t1}, {S_W}, 1")
        e(f"s_lshl_b32 {t1}, {t1}, 2")
        e(f"s_add_u32 {t0}, {t0}, {t1}")
        e(f"s_add_u32 {t0}, {t0}, {WS_FLAGS + fl}")
        e(f"s_waitcnt vmcnt(0)")
        self.flag_store(t0, 18)
    def exchange_setup(self, red):
        e = self.e
        t0 = T[0]
        e(f"s_and_b32 {t0}, {S_W}, 1")
        e(f"s_lshl_b32 {t0}, {t0}, 1")
        e(f"s_lshr_b32 {T[1]}, {S_W}, 1")
        e(f"s_add_u32 {t0}, {t0}, {T[1]}")
        e(f"s_lshl_b32 {t0}, {t0}, 12")
        e(f"s_add_u32 {t0}, {t0}, {red}")
        e(f"v_add_u32 v24, {t0}, v1")
        e(f"v_xor_b32 v25, 0x1000, v24")
    def out_setup(self, tg, stbuf, fl):
        e = self.e
        t1 = T[1]
        e(f"s_lshl_b32 {T[9]}, {tg}, 12")
        e(f"s_add_u32 {T[9]}, {T[9]}, {stbuf}")
        e(f"s_and_b32 {t1}, {S_P}, 7")
        e(f"s_lshl_b32 {t1}, {t1}, 9")
        e(f"s_add_u32 {T[9]}, {T[9]}, {t1}")
        e(f"s_lshr_b32 {t1}, {S_W}, 1")
        e(f"s_lshl_b32 {t1}, {t1}, 3")
        e(f"s_add_u32 {T[9]}, {T[9]}, {t1}")
        e(f"s_lshl_b32 {T[10]}, {T[7]}, 7")
        e(f"s_add_u32 {T[10]}, {T[10]}, {S_FLB}")
        e(f"s_and_b32 {t1}, {S_P}, 7")
        e(f"s_lshl_b32 {t1}, {t1}, 3")
        e(f"s_add_u32 {T[10]}, {T[10]}, {t1}")
        e(f"s_lshr_b32 {t1}, {S_W}, 1")
        e(f"s_lshl_b32 {t1}, {t1}, 2")
        e(f"s_add_u32 {T[10]}, {T[10]}, {t1}")
        e(f"s_add_u32 {T[10]}, {T[10]}, {WS_FLAGS + fl}")
    def exchange(self, red, accS, RX, bf, bg, accK=None):
        e = self.e
        if bf: self.barrier(bf)
        for q in range(4):
            e(f"ds_write_b128 v25, {vr(accS+4*q)} offset:{q*1024}")
        for i in range(8):
            e(f"v_lshlrev_b32 v{RX+2*i}, 16, v{2+i}")
            e(f"v_and_b32 v{RX+2*i+1}, 0xffff0000, v{2+i}")
        for i in range(8):
            e(f"v_pk_add_f32 v[{accK+2*i}:{accK+2*i+1}], v[{accK+2*i}:{accK+2*i+1}], v[{RX+2*i}:{RX+2*i+1}]")
        e(f"s_waitcnt lgkmcnt(0)")
        self.barrier(bg)
        for q in range(4):
            e(f"ds_read_b128 {vr(RX+4*q)}, v24 offset:{q*1024}")

    def wo_compute(self):
        e = self.e
        ACT = 128; accK, accS = 80, 96; RING = 48; AKP, ASN = 12, 13; RX = 112
        t0, t1, TG = T[0], T[1], T[6]
        self.tile64_addr(AKP, ASN)
        self.tg64(TG)
        self.exchange_setup(RED_WO)
        e(f"s_lshl_b32 {T[2]}, {S_LAY}, 19")
        e(f"s_add_u32 {T[2]}, {T[2]}, {WS_ST}")
        self.out_setup(TG, T[2], FL2)
        e(f"""
        v_and_b32 v26, 15, v0
        v_lshlrev_b32 v26, 4, v26
        v_lshrrev_b32 v21, 4, v0
        v_and_b32 v21, 1, v21
        v_lshlrev_b32 v21, 14, v21
        v_add_u32 v26, v26, v21
        v_lshrrev_b32 v21, 5, v0
        v_lshlrev_b32 v21, 8, v21
        v_add_u32 v26, v26, v21
        s_lshl_b32 {T[8]}, {TG}, 15
        s_lshl_b32 {t1}, {S_LAY}, 21
        s_add_u32 {T[8]}, {T[8]}, {t1}
        s_and_b32 {t1}, {S_P}, 7
        s_lshl_b32 {t1}, {t1}, 11
        s_add_u32 {T[8]}, {T[8]}, {t1}
        s_lshr_b32 {t1}, {S_W}, 1
        s_lshl_b32 {t1}, {t1}, 10
        s_add_u32 {T[8]}, {T[8]}, {t1}
        s_add_u32 {T[8]}, {T[8]}, {WS_X1}
        """)
        e(f"s_lshl_b32 {t0}, {T[7]}, 1")
        e(f"s_lshr_b32 {t1}, {S_W}, 1")
        e(f"s_add_u32 {t0}, {t0}, {t1}")
        e(f"s_lshl_b32 {t0}, {t0}, 7")
        e(f"s_add_u32 {t0}, {t0}, {S_FLB}")
        e(f"s_add_u32 {t0}, {t0}, {WS_FLAGS + FL1}")
        self.poll(t0, 10, 16, "FL1")
        self.stamp(6)
        e(f"s_lshl_b32 {t0}, {TG}, 15")
        e(f"s_lshl_b32 {t1}, {S_LAY}, 21")
        e(f"s_add_u32 {t0}, {t0}, {t1}")
        e(f"s_lshr_b32 {t1}, {S_W}, 1")
        e(f"s_lshl_b32 {t1}, {t1}, 10")
        e(f"s_add_u32 {t0}, {t0}, {t1}")
        e(f"s_add_u32 {t0}, {t0}, {WS_OF}")
        SA = T[5]
        e(f"s_mov_b32 {SA}, {t0}")
        vq = Q(63)
        def ld(u):
            e(f"buffer_load_dwordx4 {vr(ACT+4*u)}, v1, {SRD_WS}, {SA} offen offset:{(u&1)*2048} sc1"); vq.issue(u)
            if u & 1: e(f"s_add_u32 {SA}, {SA}, 4096")
        NPRE = self.P.get('wo_pre', 10)
        w_init, w_sched = ramp(16, self.P.get('wo_n0', 10), NPRE)
        for u in w_init: ld(u)
        lg = Q(15)
        def rd(u):
            sl = RING + 8 * (u % 4)
            for t, a in ((0, AKP), (1, ASN)):
                e(f"ds_read_b64_tr_b16 v[{sl+4*t}:{sl+4*t+1}], v{a} offset:{u*4096}"); lg.issue()
                e(f"ds_read_b64_tr_b16 v[{sl+4*t+2}:{sl+4*t+3}], v{a} offset:{u*4096+1024}"); lg.issue((u, t))
        for u in range(3): rd(u)
        for u in range(16):
            sl = RING + 8 * (u % 4)
            e(f"s_waitcnt vmcnt({vq.cnt(u)}) lgkmcnt({lg.cnt((u,1))})")
            c = "0" if u == 0 else vr(accK, 16)
            e(f"v_mfma_f32_32x32x16_bf16 {vr(accK,16)}, {vr(sl)}, {vr(ACT+4*u)}, {c}")
            if u + 3 < 16: rd(u + 3)
            c = "0" if u == 0 else vr(accS, 16)
            e(f"v_mfma_f32_32x32x16_bf16 {vr(accS,16)}, {vr(sl+4)}, {vr(ACT+4*u)}, {c}")
            for x in w_sched[u]: ld(x)
        self.stamp(7)
        self.exchange(RED_WO, accS, RX, "B_f", "B_g", accK)
        self.epilogue64(accK, RX, RED_WO, False)
        self.store_mode([f"buffer_store_dwordx4 v[2:5], v26, {SRD_WS}, {T[8]} offen",
                         f"buffer_store_dwordx4 v[6:9], v26, {SRD_WS}, {T[8]} offen offset:512"])
        self.stats_store2()
        e(f"s_waitcnt vmcnt(0)")
        self.flag_store(T[10], 18)
        self.stamp(8)

    def w1_compute(self):
        e = self.e
        ACT = 128; ACC = 72; RING = 32; NR = 9
        A0, A1, A2 = 12, 13, 14
        t0, t1, TG = T[0], T[1], T[6]
        self.barrier("B_h0")
        e(f"""
        v_lshrrev_b32 v16, 4, v0
        v_and_b32 v17, 1, v16
        v_lshlrev_b32 v17, 2, v17
        v_lshrrev_b32 v16, 1, v16
        v_lshlrev_b32 v16, 4, v16
        v_add_u32 v16, v16, v17
        v_and_b32 v17, 15, v0
        v_lshrrev_b32 v17, 2, v17
        v_add_u32 v16, v16, v17
        v_mul_u32_u24 v16, 224, v16
        v_and_b32 v17, 3, v0
        v_lshlrev_b32 v17, 3, v17
        v_add_u32 v{A0}, v16, v17
        v_add_u32 v{A1}, 0x10000, v{A0}
        v_add_u32 v{A2}, 0x20000, v{A0}
        s_lshl_b32 {TG}, {S_C}, 2
        s_add_u32 {TG}, {TG}, {S_W}
        s_lshl_b32 {t0}, {S_W}, 7
        s_add_u32 {t0}, {t0}, {S_FLB}
        s_add_u32 {t0}, {t0}, {WS_FLAGS + FL2}
        """)
        self.poll(t0, 10, 16, "FL2")
        self.stamp(9)
        SA, SB = T[5], T[4]
        e(f"s_lshl_b32 {SA}, {TG}, 15")
        e(f"s_lshl_b32 {t1}, {S_LAY}, 21")
        e(f"s_add_u32 {SA}, {SA}, {t1}")
        e(f"s_add_u32 {SA}, {SA}, {WS_X1}")
        e(f"s_add_u32 {SB}, {SA}, 16384")
        vq = Q(63)
        def ld(kb):
            e(f"buffer_load_dwordx4 {vr(ACT+8*kb)}, v1, {SRD_WS}, {SA} offen offset:{(kb&3)*1024} sc1"); vq.issue()
            e(f"buffer_load_dwordx4 {vr(ACT+8*kb+4)}, v1, {SRD_WS}, {SB} offen offset:{(kb&3)*1024} sc1"); vq.issue(kb)
            if (kb & 3) == 3 and kb < 15:
                e(f"s_add_u32 {SA}, {SA}, 4096")
                e(f"s_add_u32 {SB}, {SB}, 4096")
        KPRE = self.P.get('w1_pre', 12)
        k_init, k_sched = ramp(16, self.P.get('w1_n0', 4), KPRE)
        for kb in k_init: ld(kb)
        e(f"s_lshl_b32 {T[3]}, {TG}, 12")
        e(f"s_lshl_b32 {t1}, {S_LAY}, 19")
        e(f"s_add_u32 {T[3]}, {T[3]}, {t1}")
        e(f"s_add_u32 {T[3]}, {T[3]}, {WS_ST}")
        def ld_stats():
            for u in range(4):
                e(f"buffer_load_dwordx4 {vr(16+4*u)}, v1, {SRD_WS}, {T[3]} offen offset:{u*1024} sc1"); vq.issue('st')
        HB, HB2, FLA = T[8], T[9], T[10]
        e(f"""
        v_lshrrev_b32 v70, 4, v0
        v_and_b32 v70, 1, v70
        v_lshlrev_b32 v70, 9, v70
        v_lshrrev_b32 v71, 5, v0
        v_lshlrev_b32 v71, 8, v71
        v_add_u32 v70, v70, v71
        v_and_b32 v71, 15, v0
        v_lshlrev_b32 v71, 4, v71
        v_add_u32 v15, v70, v71
        s_mul_i32 {HB}, {TG}, 114688
        s_mul_i32 {t1}, {S_LAY}, {HF_L}
        s_add_u32 {HB}, {HB}, {t1}
        s_mul_i32 {t1}, {S_P}, 7168
        s_add_u32 {HB}, {HB}, {t1}
        s_add_u32 {HB}, {HB}, {WS_HF}
        s_add_u32 {HB2}, {HB}, 4096
        s_lshl_b32 {FLA}, {S_W}, 7
        s_lshl_b32 {t1}, {S_P}, 2
        s_add_u32 {FLA}, {FLA}, {t1}
        s_add_u32 {FLA}, {FLA}, {S_FLB}
        s_add_u32 {FLA}, {FLA}, {WS_FLAGS + FL3}
        """)
        self.barrier("B_h")
        self.stamp(18)
        lg = Q(15)
        seq = [(kb, nt) for kb in range(16) for nt in range(7)]
        def rd(n):
            kb, nt = seq[n]
            sl = RING + 4 * (n % NR)
            for rdn in range(2):
                addr = W1_BASE(kb) + rdn * 8 * 224 + nt * 32
                if addr >= 131072: a, off = A2, addr - 131072
                elif addr >= 65536: a, off = A1, addr - 65536
                else: a, off = A0, addr
                e(f"ds_read_b64_tr_b16 v[{sl+2*rdn}:{sl+2*rdn+1}], v{a} offset:{off}"); lg.issue((n, rdn))
        PM, PS, RS = 24, 25, 26
        E0, E1 = 60 + 12, 64 + 12
        E0, E1 = 20, 68
        R0, R1 = 28, 30
        class Rec:
            def __init__(s_): s_.L = []
            def __call__(s_, x):
                for l in x.split("\n"):
                    if l.strip(): s_.L.append(l.strip())
        rec = Rec(); keep = self.e; self.e = rec
        self.sum_partials(16, 16, 17)
        self.stats_finalize(16, 17, 18 if False else 20, PM, PS, RS)
        self.e = keep
        fill = list(rec.L)
        fill += [f"v_and_b32 v{PS}, 0xffff, v{PS}",
                 f"v_mov_b32 v{E0}, v{PM}", f"v_mov_b32 v{E1}, v{PM}", f"v_mov_b32 v{E0+1}, v{PS}", f"v_mov_b32 v{E1+1}, v{PS}",
                 f"v_mov_b32 v{R0}, v{RS}", f"v_mov_b32 v{R1}, v{RS}",
                 f"v_permlane16_swap_b32 v{E0}, v{E1}", f"v_permlane16_swap_b32 v{E0+1}, v{E1+1}", f"v_permlane16_swap_b32 v{R0}, v{R1}",
                 f"v_cmp_gt_u32 vcc, 16, v0"]
        for E in (E0, E1):
            fill += [f"v_cndmask_b32 v{E}, 0, v{E}, vcc", f"v_cndmask_b32 v{E+1}, 0, v{E+1}, vcc", f"v_mov_b32 v{E+2}, 0", f"v_mov_b32 v{E+3}, 0"]
        FILL0 = self.P.get("w1_fill", 9)
        PRE = 7
        for n in range(PRE): rd(n)
        for n, (kb, nt) in enumerate(seq):
            sl = RING + 4 * (n % NR)
            if nt == 0:
                e(f"s_waitcnt vmcnt({vq.cnt(kb)}) lgkmcnt({lg.cnt((n,1))})")
            else:
                e(f"s_waitcnt lgkmcnt({lg.cnt((n,1))})")
            if kb == FILL0 and nt == 0: e(f"s_waitcnt vmcnt({vq.cnt('st')})")
            for tt in range(2):
                acc = ACC + (nt * 2 + tt) * 4
                c = "0" if kb == 0 else vr(acc)
                e(f"v_mfma_f32_16x16x32_bf16 {vr(acc)}, {vr(sl)}, {vr(ACT+8*kb+4*tt)}, {c}")
                if tt == 0 and n + PRE < len(seq): rd(n + PRE)
                if tt == 1 and kb >= FILL0 and fill: e(fill.pop(0))
            if nt == 1:
                for x in k_sched[kb]: ld(x)
                if kb == 2: ld_stats()
            if nt == 6 and kb == self.P.get("pw_kb", 9): self.barrier("PW")
        for x in fill: e(x)
        self.stamp(10)
        XA = RING
        e(f"v_and_b32 v60, 15, v0")
        e(f"v_lshlrev_b32 v60, 3, v60")
        e(f"v_add_u32 v60, {L_XW1}, v60")
        for nt in range(7):
            e(f"ds_read_b64 v[{XA+4*nt}:{XA+4*nt+1}], v60 offset:{nt*128}")
            e(f"v_mov_b32 v{XA+4*nt+2}, 0")
            e(f"v_mov_b32 v{XA+4*nt+3}, 0")
        for nt in range(7):
            e(f"s_waitcnt lgkmcnt({6-nt})")
            for tt, E in ((0, E0), (1, E1)):
                acc = ACC + (nt * 2 + tt) * 4
                e(f"v_mfma_f32_16x16x32_bf16 {vr(acc)}, {vr(XA+4*nt)}, {vr(E)}, {vr(acc)}")
        OUT = 128
        stores = []
        for nt in range(7):
            for tt, R in ((0, R0), (1, R1)):
                acc = ACC + (nt * 2 + tt) * 4
                for r in range(4):
                    e(f"v_max_f32 v{acc+r}, 0, v{acc+r}")
                for i in range(2):
                    e(f"v_pk_mul_f32 v[{acc+2*i}:{acc+2*i+1}], v[{acc+2*i}:{acc+2*i+1}], v[{R}:{R+1}] op_sel_hi:[1,0]")
                for i in range(2):
                    e(f"v_pk_mul_f32 v[{acc+2*i}:{acc+2*i+1}], v[{acc+2*i}:{acc+2*i+1}], v[{acc+2*i}:{acc+2*i+1}]")
                for i in range(2):
                    e(f"v_cvt_pk_bf16_f32 v{OUT+4*nt+2*tt+i}, v{acc+2*i}, v{acc+2*i+1}")
            e(f"v_permlane32_swap_b32 v{OUT+4*nt}, v{OUT+4*nt+2}")
            e(f"v_permlane32_swap_b32 v{OUT+4*nt+1}, v{OUT+4*nt+3}")
        st = []
        for nt in range(7):
            base, off = (HB, nt * 1024) if nt < 4 else (HB2, (nt - 4) * 1024)
            st.append(f"buffer_store_dwordx4 {vr(OUT+4*nt)}, v15, {SRD_WS}, {base} offen offset:{off}")
        self.store_mode(st)
        self.barrier("B_i")
        e(f"s_waitcnt vmcnt(0)")
        self.flag_store(FLA, 18)
        self.stamp(11)

    def w2_compute(self):
        e = self.e
        ACT = 128; NA = 32; accK, accS = 80, 96; RING = 48; RX = 112
        AK = [12, 14, 22]; AS = [13, 15, 23]
        t0, t1, TG = T[0], T[1], T[6]
        self.tile64_addr(AK[0], AS[0])
        for i in (1, 2):
            e(f"v_add_u32 v{AK[i]}, {i*0x10000}, v{AK[0]}")
            e(f"v_add_u32 v{AS[i]}, {i*0x10000}, v{AS[0]}")
        self.tg64(TG)
        self.exchange_setup(RED_W2)
        e(f"s_mov_b32 {T[2]}, {WS_ST + 0x40000}")
        self.out_setup(TG, T[2], FL4)
        e(f"""
        s_lshl_b32 {T[8]}, {TG}, 15
        s_and_b32 {t1}, {S_P}, 7
        s_lshl_b32 {t1}, {t1}, 12
        s_add_u32 {T[8]}, {T[8]}, {t1}
        s_lshr_b32 {t1}, {S_W}, 1
        s_lshl_b32 {t1}, {t1}, 11
        s_add_u32 {T[8]}, {T[8]}, {t1}
        s_add_u32 {T[8]}, {T[8]}, {WS_XF}
        """)
        e(f"s_mov_b32 s36, s{S_B2[0]}")
        e(f"s_and_b32 s37, s{S_B2[1]}, 0xffff")
        e(f"s_mov_b32 s38, 1024")
        e(f"s_mov_b32 s39, 0x20000")
        e(f"s_and_b32 {t0}, {S_P}, 7")
        e(f"s_lshl_b32 {t0}, {t0}, 7")
        e(f"s_lshr_b32 {t1}, {S_W}, 1")
        e(f"s_lshl_b32 {t1}, {t1}, 6")
        e(f"s_add_u32 {t0}, {t0}, {t1}")
        e(f"v_lshrrev_b32 v16, 5, v0")
        e(f"v_lshlrev_b32 v16, 3, v16")
        for q in range(4):
            e(f"buffer_load_dwordx2 v[{RX+2*q}:{RX+2*q+1}], v16, {SRD_T}, {t0} offen offset:{16*q}")
        e(f"s_lshl_b32 {t0}, {T[7]}, 7")
        e(f"s_add_u32 {t0}, {t0}, {S_FLB}")
        e(f"s_add_u32 {t0}, {t0}, {WS_FLAGS + FL3}")
        self.poll(t0, 10, 16, "FL3")
        self.stamp(12)
        e(f"s_mul_i32 {t0}, {TG}, 114688")
        e(f"s_mul_i32 {t1}, {S_LAY}, {HF_L}")
        e(f"s_add_u32 {t0}, {t0}, {t1}")
        e(f"s_lshr_b32 {t1}, {S_W}, 1")
        e(f"s_lshl_b32 {t1}, {t1}, 10")
        e(f"s_add_u32 {t0}, {t0}, {t1}")
        SA = T[5]
        e(f"s_add_u32 {SA}, {t0}, {WS_HF}")
        vq = Q(63)
        def ld(u):
            e(f"buffer_load_dwordx4 {vr(ACT+4*(u%NA))}, v1, {SRD_WS}, {SA} offen offset:{(u&1)*2048} sc1"); vq.issue(u)
            if u & 1: e(f"s_add_u32 {SA}, {SA}, 4096")
        NPRE = self.P.get('w2_pre', 12)
        v_init, v_sched = ramp(56, self.P.get('w2_n0', 12), NPRE)
        for u in v_init: ld(u)
        for q in range(4):
            for i in range(2):
                e(f"v_lshlrev_b32 v{accK+4*q+2*i}, 16, v{RX+2*q+i}")
                e(f"v_and_b32 v{accK+4*q+2*i+1}, 0xffff0000, v{RX+2*q+i}")
        self.barrier("B_j")
        self.stamp(19)
        lg = Q(15)
        def rd(u):
            sl = RING + 8 * (u % 4)
            base = W2_SLOT(u) * 4096
            for t, AA in ((0, AK), (1, AS)):
                for rdn in range(2):
                    addr = base + rdn * 1024
                    a = AA[addr >> 16]; off = addr & 0xffff
                    e(f"ds_read_b64_tr_b16 v[{sl+4*t+2*rdn}:{sl+4*t+2*rdn+1}], v{a} offset:{off}"); lg.issue((u, t, rdn))
        for u in range(3): rd(u)
        for u in range(56):
            sl = RING + 8 * (u % 4)
            if u == 17: self.barrier("X")
            if u + 3 == 39: self.barrier("Y")
            e(f"s_waitcnt vmcnt({vq.cnt(u)}) lgkmcnt({lg.cnt((u,1,1))})")
            if u % 8 == 0: self.stamp(24 + u // 8)
            e(f"v_mfma_f32_32x32x16_bf16 {vr(accK,16)}, {vr(sl)}, {vr(ACT+4*(u%NA))}, {vr(accK,16)}")
            if u + 3 < 56: rd(u + 3)
            c = "0" if u == 0 else vr(accS, 16)
            e(f"v_mfma_f32_32x32x16_bf16 {vr(accS,16)}, {vr(sl+4)}, {vr(ACT+4*(u%NA))}, {c}")
            for x in v_sched[u]: ld(x)
            pass
        self.stamp(13)
        self.exchange(RED_W2, accS, RX, None, "B_k", accK)
        self.epilogue64(accK, RX, RED_W2, True)
        lf, ld_ = e.label("FINAL"), e.label("W2D")
        e(f"s_cmp_eq_u32 {S_LAY}, {self.nlayers-1}")
        e(f"s_cbranch_scc1 {lf}")
        self.store_mode([f"buffer_store_dwordx4 v[2:5], v1, {SRD_WS}, {T[8]} offen",
                         f"buffer_store_dwordx4 v[6:9], v1, {SRD_WS}, {T[8]} offen offset:1024"])
        self.stats_store2()
        e(f"s_waitcnt vmcnt(0)")
        self.flag_store(T[10], 18)
        e(f"s_branch {ld_}")
        e(f"{lf}:")
        e(f"""
        v_and_b32 v20, 31, v0
        v_lshlrev_b32 v20, 10, v20
        v_lshrrev_b32 v21, 5, v0
        v_lshlrev_b32 v21, 3, v21
        v_add_u32 v20, v20, v21
        s_lshl_b32 {t0}, {TG}, 15
        s_and_b32 {t1}, {S_P}, 7
        s_lshl_b32 {t1}, {t1}, 7
        s_add_u32 {t0}, {t0}, {t1}
        s_lshr_b32 {t1}, {S_W}, 1
        s_lshl_b32 {t1}, {t1}, 6
        s_add_u32 {t0}, {t0}, {t1}
        """)
        for q in range(4):
            e(f"buffer_store_dwordx2 v[{2+2*q}:{3+2*q}], v20, {SRD_OUT}, {t0} offen offset:{16*q}")
        e(f"{ld_}:")
        self.stamp(14)

    def spf(self, srd_lo, batch_bytes, b, nlines, wait_first=True):
        e = self.e
        if not self.P.get("spf", 1): return
        assert batch_bytes == 128 * nlines * 128
        t = T[12]
        if wait_first: e(f"s_waitcnt lgkmcnt(0)")
        e(f"s_mul_i32 {t}, {T[11]}, {nlines*128}")
        e(f"s_add_u32 {t}, {t}, {b*batch_bytes}")
        e(f"s_add_u32 s0, s{srd_lo}, {t}")
        e(f"s_addc_u32 s1, s{srd_lo+1}, 0")
        for i in range(nlines):
            e(f"s_load_dword s96, s[0:1], {i*128}")
    def spf_w2(self, b, **k): self.spf(24, 229376, b, 14, **k)
    def spf_wq(self, b, **k): self.spf(12, 196608, b, 12, **k)
    def spf_wo(self, b, **k): self.spf(16, 131072, b, 8, **k)
    def spf_wo14(self, b, **k):
        e = self.e
        if not self.P.get("spf", 1): return
        n = (11, 11, 10)[b]
        t = T[12]
        e(f"s_waitcnt lgkmcnt(0)")
        e(f"s_lshl_b32 {t}, {T[11]}, 12")
        e(f"s_add_u32 s0, s16, {t}")
        e(f"s_addc_u32 s1, s17, 0")
        for i in range(n):
            e(f"s_load_dword s96, s[0:1], {(b*11+i)*128}")
    def spf_w1(self, b, **k): self.spf(20, 229376, b, 14, **k)

    def helper(self):
        e = self.e
        VQ, VO = 2, 3
        W1V = [4, 5, 6, 7, 8, 9, 22]
        SV_WO, SV_WQ, STG = 96, 160, 32
        t0, t1, t2, t3 = T[0], T[1], T[2], T[3]
        DS, DL = T[8], T[9]
        e("L_HELPER:")
        e(f"s_sub_u32 {S_H}, {S_W}, 4")
        e(f"s_lshr_b32 {T[11]}, s2, 3")
        e(f"s_lshl_b32 {T[11]}, {T[11]}, 2")
        e(f"s_add_u32 {T[11]}, {T[11]}, {S_H}")
        e(f"v_lshlrev_b32 v24, 7, v0")
        li0 = e.label("HCODE")
        e(f"s_cmp_lg_u32 {S_H}, 3")
        e(f"s_cbranch_scc1 {li0}")
        if self.P.get("codepf", 1):
            e(f"s_getpc_b64 s[94:95]")
            e("L_PCREF:")
            e(f"s_sub_u32 s94, s94, L_PCREF-{KNAME}")
            e(f"s_subb_u32 s95, s95, 0")
            e(f"s_lshr_b32 {t0}, s2, 3")
            e(f"s_mul_i32 {t0}, {t0}, ((L_CODE_END-{KNAME})/4096)*128")
            e(f"v_add_u32 v25, {t0}, v24")
            e(f"v_cmp_gt_u32 vcc, (L_CODE_END-{KNAME})/4096, v0")
            e(f"s_and_saveexec_b64 s[92:93], vcc")
            e(f"global_load_dword v23, v25, s[94:95]")
            e(f"s_mov_b64 exec, -1")
        if self.P.get("pfq0", 1):
            e(f"s_lshr_b32 {t0}, s2, 3")
            e(f"s_mul_i32 {t0}, {t0}, 12288")
            for g in range(self.P.get("pfq0n", 4)):
                e(f"buffer_load_dword v23, v24, {SRD_WQKV}, {t0} offen")
                e(f"s_mov_b32 exec_hi, 0")
                e(f"s_add_u32 {t1}, {t0}, 8192")
                e(f"buffer_load_dword v23, v24, {SRD_WQKV}, {t1} offen")
                e(f"s_mov_b32 exec_hi, -1")
                e(f"s_add_u32 {t0}, {t0}, 393216")
        e(f"{li0}:")
        e(f"""
        v_lshrrev_b32 v{VQ}, 2, v0
        v_mul_u32_u24 v{VQ}, 3072, v{VQ}
        v_and_b32 v12, 3, v0
        v_lshlrev_b32 v12, 4, v12
        v_add_u32 v{VQ}, v{VQ}, v12
        """)
        def wq_setup():
            e(f"s_add_u32 {DS}, {S_H}, 1")
            e(f"s_lshl_b32 {DS}, {DS}, 10")
            e(f"s_cmp_eq_u32 {S_H}, 2")
            e(f"s_cselect_b32 {DS}, 0, {DS}")
            e(f"s_lshl_b32 {DL}, {S_P}, 6")
            e(f"s_add_u32 {DS}, {DS}, {DL}")
            e(f"s_lshl_b32 {DL}, {S_H}, 15")
        def wq_issue(n):
            self.dma_loop(SRD_WQKV, VQ, DS, 16 * 3072, DL, 1024, n)
        wq_setup()
        li1 = e.label("HW0")
        e(f"s_cmp_ge_u32 {S_H}, 2")
        e(f"s_cbranch_scc1 {li1}")
        wq_issue(16)
        e(f"{li1}:")
        e(f"""
        v_lshrrev_b32 v{VO}, 3, v0
        v_lshlrev_b32 v{VO}, 10, v{VO}
        v_lshrrev_b32 v12, 4, v0
        v_and_b32 v12, 1, v12
        v_lshlrev_b32 v12, 2, v12
        v_and_b32 v13, 7, v0
        v_xor_b32 v12, v12, v13
        v_lshlrev_b32 v12, 4, v12
        v_add_u32 v{VO}, v{VO}, v12
        """)
        for i, r in enumerate(W1V):
            e(f"v_add_u32 v12, {64*i}, v0")
            e(f"v_mul_u32_u24 v13, 4682, v12")
            e(f"v_lshrrev_b32 v13, 16, v13            ; row = G/14")
            e(f"v_mul_u32_u24 v14, 14, v13")
            e(f"v_sub_u32 v14, v12, v14               ; q")
            e(f"v_mul_u32_u24 v13, 3584, v13")
            e(f"v_lshlrev_b32 v14, 4, v14")
            e(f"v_add_u32 v{r}, v13, v14")
        def cs_setup():
            e(f"""
            v_and_b32 v16, 15, v0
            v_lshrrev_b32 v16, 2, v16
            v_lshlrev_b32 v16, 6, v16
            v_lshrrev_b32 v17, 4, v0
            v_and_b32 v17, 1, v17
            v_lshlrev_b32 v17, 5, v17
            v_add_u32 v16, v16, v17
            v_and_b32 v17, 3, v0
            v_lshlrev_b32 v17, 3, v17
            v_add_u32 v16, v16, v17
            v_lshrrev_b32 v17, 5, v0
            v_lshlrev_b32 v17, 9, v17
            v_add_u32 v16, v16, v17
            s_lshl_b32 {t1}, {S_H}, 15
            v_add_u32 v12, {t1}, v16
            """)
            for r in range(48, 52): e(f"v_mov_b32 v{r}, {S_ONES}")
            for r in range(32, 48): e(f"v_mov_b32 v{r}, 0")
        def cs_chunk(c):
            for hf in range(2):
                for s in range(8 * c + 4 * hf, 8 * c + 4 * hf + 4):
                    b = 52 + 4 * (s % 4)
                    e(f"ds_read_b64_tr_b16 v[{b}:{b+1}], v12 offset:{s*1024}")
                    e(f"ds_read_b64_tr_b16 v[{b+2}:{b+3}], v12 offset:{s*1024+256}")
                for s in range(4):
                    b = 52 + 4 * s
                    e(f"s_waitcnt lgkmcnt({6-2*s})")
                    e(f"v_mfma_f32_32x32x16_bf16 v[32:47], v[48:51], v[{b}:{b+3}], v[32:47]")
        def cs_finish():
            e(f"s_nop 7"); e(f"s_nop 3")
            e(f"v_sub_f32 v16, 0, v32")
            e(f"v_cvt_pk_bf16_f32 v17, v16, v16")
            e(f"v_lshlrev_b32 v18, 16, v17")
            e(f"v_sub_f32 v18, v16, v18")
            e(f"v_cvt_pk_bf16_f32 v17, v16, v18")
            e(f"v_and_b32 v19, 31, v0")
            e(f"v_lshlrev_b32 v19, 2, v19")
            e(f"s_lshl_b32 {t1}, {S_H}, 7")
            e(f"s_add_u32 {t1}, {t1}, {L_XWQ}")
            e(f"v_add_u32 v19, {t1}, v19")
            e(f"ds_write_b32 v19, v17")
            e(f"s_waitcnt lgkmcnt(0)")
        l2, l3, lq0 = e.label("H2Q"), e.label("H3Q"), e.label("HQ0E")
        self.stamp(0)
        e(f"s_cmp_eq_u32 {S_H}, 3")
        e(f"s_cbranch_scc1 {l3}")
        e(f"s_cmp_eq_u32 {S_H}, 2")
        e(f"s_cbranch_scc1 {l2}")
        cs_setup()
        for c in range(4):
            e(f"s_waitcnt vmcnt({8 if c < 3 else 0})")
            self.stamp(9+c)
            self.barrier(f"Q{c}")
            if c < 2: wq_issue(8)
            cs_chunk(c)
        cs_finish()
        self.barrier("Q4")
        self.barrier("Q5")
        e(f"s_branch {lq0}")
        e(f"{l2}:")
        self.barrier("Q0"); self.barrier("Q1")
        wq_issue(16)
        self.barrier("Q2")
        wq_issue(16)
        self.barrier("Q3")
        cs_setup()
        for c in range(3):
            e(f"s_waitcnt vmcnt({24-8*c})")
            cs_chunk(c)
        e(f"s_waitcnt vmcnt(0)")
        self.barrier("Q4")
        cs_chunk(3)
        cs_finish()
        self.barrier("Q5")
        e(f"s_branch {lq0}")
        e(f"{l3}:")
        e(f"""
        v_mov_b32 v12, 0
        v_mov_b32 v13, 0
        v_mov_b32 v14, 0
        v_mov_b32 v15, 0
        s_lshl_b32 {t0}, {S_C}, 4
        s_add_u32 {t0}, {t0}, {S_P}
        s_lshl_b32 {t1}, {t0}, 10
        s_add_u32 {t1}, {t1}, {WS_KVF}
        buffer_store_dwordx4 v[12:15], v1, {SRD_WS}, {t1} offen sc1
        s_lshl_b32 {t1}, {S_P}, 8
        s_add_u32 {t1}, {t1}, {S_FLB}
        s_add_u32 {t1}, {t1}, {WS_FLAGS}
        s_mov_b32 exec_lo, 0xffff
        s_mov_b32 exec_hi, 0
        buffer_store_dwordx4 v[12:15], v1, {SRD_WS}, {t1} offen sc1
        s_mov_b64 exec, -1
        v_mov_b32 v16, 0x3f80
        v_mov_b32 v17, 0
        v_mov_b32 v18, 0
        v_mov_b32 v19, 0
        v_lshlrev_b32 v20, 7, v0
        v_add_u32 v20, {L_CONST}, v20
        s_mov_b64 exec, 15
        ds_write_b128 v20, v[16:19]
        s_mov_b64 exec, -1
        s_getreg_b32 {t2}, hwreg(HW_REG_XCC_ID)
        s_and_b32 {t2}, {t2}, 15
        s_or_b32 {t2}, {t2}, 0x80
        s_mov_b32 s36, s{S_DBG[0]}
        s_and_b32 s37, s{S_DBG[1]}, 0xffff
        s_mov_b32 s38, 256
        s_mov_b32 s39, 0x20000
        v_mov_b32 v16, {t2}
        s_mov_b32 {T[13]}, {t0}
        s_waitcnt lgkmcnt(0)
        """)
        for c in range(3): self.barrier(f"Q{c}")
        e(f"s_waitcnt vmcnt(0)")
        e(f"s_mov_b64 exec, 1")
        e(f"buffer_store_byte v16, off, {SRD_T}, {T[13]} sc1")
        e(f"s_mov_b64 exec, -1")
        self.barrier("Q3")
        self.barrier("Q4")
        self.barrier("Q5")
        e(f"{lq0}:")
        e(f"s_mul_i32 {t0}, {S_H}, {24*1024}")
        e(f"v_add_u32 v12, {t0}, v1")
        for i in range(24):
            e(f"ds_read_b128 {vr(160+4*i)}, v12 offset:{i*1024}")
            if i == 11: e(f"s_waitcnt lgkmcnt(0)")
        e(f"s_waitcnt lgkmcnt(0)")
        e(f"s_branch L_HPOSTQ")
        e("L_HLAYER:")
        self.stamp(0)
        e(f"s_mul_i32 {t0}, {S_H}, {24*1024}")
        e(f"v_add_u32 v12, {t0}, v1")
        for i in range(24):
            e(f"ds_write_b128 v12, {vr(160+4*i)} offset:{i*1024}")
        e(f"s_waitcnt lgkmcnt(0)")
        self.stamp(8)
        for c in range(6): self.barrier(f"Q{c}")
        e("L_HPOSTQ:")
        def wo_dma():
            e(f"s_and_b32 {t0}, {S_P}, 7")
            e(f"s_lshl_b32 {t0}, {t0}, 7")
            e(f"s_lshl_b32 {t1}, {S_H}, 17")
            e(f"s_add_u32 {t0}, {t0}, {t1}")
            e(f"s_lshl_b32 {t1}, {S_H}, 14")
            self.dma_loop(SRD_WO, VO, t0, 8192, t1, 1024, 16)
        def w2reg(u):
            if u < 15: return 32 + 4 * u
            assert u >= 39
            return 92 + 4 * (u - 39)
        SVQ = 160
        def w2_load(u0, u1):
            e(f"s_and_b32 {t0}, {S_P}, 7")
            e(f"s_lshl_b32 {t0}, {t0}, 7")
            e(f"s_lshl_b32 {t2}, {S_H}, 13")
            e(f"s_add_u32 {t0}, {t0}, {t2}")
            e(f"s_add_u32 {t0}, {t0}, {u0*32*1024}")
            for u in range(u0, u1):
                e(f"buffer_load_dwordx4 {vr(w2reg(u))}, v{VO}, {SRD_W2}, {t0} offen")
                if u + 1 < u1: e(f"s_add_u32 {t0}, {t0}, {32*1024}")
        def w2_addr():
            e(f"s_lshl_b32 {t0}, {S_H}, 10")
            e(f"v_add_u32 v12, {t0}, v1")
            e(f"v_add_u32 v13, 0x10000, v12")
            e(f"v_add_u32 v14, 0x20000, v12")
        def w2_write(u):
            addr = W2_SLOT(u) * 4096
            e(f"ds_write_b128 v{12 + (addr >> 16)}, {vr(w2reg(u))} offset:{addr & 0xffff}")
        def if_l0(body, first=True):
            lb = e.label("IL0")
            e(f"s_cmp_eq_u32 {S_LAY}, 0")
            e(f"s_cbranch_scc0 {lb}")
            body()
            e(f"{lb}:")
        def nextq(b, **k):
            lnq = e.label("NOQ")
            e(f"s_cmp_lt_u32 {S_LAY}, {self.nlayers-1}")
            e(f"s_cbranch_scc0 {lnq}")
            self.spf_wq(b, **k)
            e(f"{lnq}:")
        lh = e.label("HH")
        e(f"s_cmp_lg_u32 {S_H}, 3")
        e(f"s_cbranch_scc1 {lh}")
        lr = e.label("HRDY")
        e(f"s_cmp_eq_u32 {S_LAY}, 0")
        e(f"s_cbranch_scc0 {lr}")
        e(f"s_waitcnt lgkmcnt(0)")
        self.ready_check()
        e(f"{lr}:")
        e(f"s_waitcnt lgkmcnt(0)")
        self.halo()
        e(f"{lh}:")
        e(f"s_waitcnt lgkmcnt(0)")
        self.barrier("B_c")
        self.check_stop("qkv")
        self.vpf(SRD_WO, 0, 16384)
        self.vpf(SRD_W1, 0, 57344)
        e(f"s_waitcnt vmcnt(0)")
        self.stamp(14)
        wo_dma()
        self.w1_blocks_dyn(0, 1, W1V)
        e(f"s_waitcnt vmcnt(0)")
        self.stamp(15)
        self.barrier("B_d")
        if_l0(lambda: self.spf_w2(0))
        self.w1_blocks_dyn(4, 2, W1V)
        if_l0(lambda: self.spf_w2(1))
        self.stamp(16)
        self.barrier("B_f")
        self.barrier("B_g")
        self.check_stop("wo")
        self.stamp(17)
        if_l0(lambda: self.spf_w2(2))
        self.w1_blocks_dyn(12, 1, W1V)
        e(f"s_waitcnt vmcnt(0)")
        self.stamp(19)
        self.barrier("B_h0")
        def cs1():
            e(f"s_waitcnt lgkmcnt(0)")
            self.colsum_w1()
        if_l0(cs1)
        self.barrier("B_h")
        self.stamp(24)
        if_l0(lambda: w2_load(0, 15))
        self.barrier("PW")
        e(f"s_waitcnt vmcnt(0)")
        w2_addr()
        for u in range(0, 9): w2_write(u)
        self.vpf(SRD_W2, 480*1024, 24576)
        def l0_b():
            self.vpf(SRD_W2, 1248*1024, 17408)
            w2_load(39, 56)
        if_l0(l0_b)
        self.stamp(25)
        self.barrier("B_i")
        self.stamp(26)
        self.check_stop("w1")
        self.w2_dma(15, 32, VO)
        self.w2_dma(32, 39, VO)
        for u in range(9, 15): w2_write(u)
        e(f"s_waitcnt vmcnt(0) lgkmcnt(0)")
        self.stamp(28)
        self.barrier("B_j")
        self.barrier("X")
        self.stamp(30)
        e(f"s_waitcnt lgkmcnt(0)")
        for u in range(39, 56): w2_write(u)
        e(f"s_waitcnt lgkmcnt(0)")
        self.stamp(13)
        self.barrier("Y")
        self.barrier("B_k")
        self.check_stop("w2")
        e(f"s_add_u32 {S_LAY}, {S_LAY}, 1")
        e(f"s_add_u32 {S_EPOCH}, {S_EPOCH}, 1")
        e(f"s_cmp_lt_u32 {S_LAY}, {self.nlayers}")
        e(f"s_cbranch_scc1 L_HLAYER")
        e(f"s_branch L_END")

    def l2_prefetch(self, srd, total):
        e = self.e
        if not self.P.get("pf", 1): return
        size = total // 32
        t0 = T[0]
        e(f"s_lshr_b32 {t0}, s2, 3")
        e(f"s_mul_i32 {t0}, {t0}, {size}")
        for i in range(size // 8192):
            e(f"buffer_load_dword v23, v24, {srd}, {t0} offen")
            if i + 1 < size // 8192: e(f"s_add_u32 {t0}, {t0}, 8192")
    def vpf(self, srd, base, share):
        e = self.e
        if not self.P.get("vpf", 1): return
        t0, t1 = T[0], T[1]
        lines = share // 128
        per = (lines + 3) // 4
        e(f"s_lshr_b32 {t0}, s2, 3")
        e(f"s_mul_i32 {t0}, {t0}, {share}")
        e(f"s_mul_i32 {t1}, {S_H}, {per*128}")
        e(f"s_add_u32 {t0}, {t0}, {t1}")
        e(f"s_add_u32 {t0}, {t0}, {base}")
        n = per
        while n > 0:
            k = min(n, 64)
            if k < 64:
                if k <= 32:
                    e(f"s_mov_b32 exec_lo, {hex((1 << k) - 1)}")
                    e(f"s_mov_b32 exec_hi, 0")
                else:
                    e(f"s_mov_b32 exec_hi, {hex((1 << (k - 32)) - 1)}")
            e(f"buffer_load_dword v23, v24, {srd}, {t0} offen")
            if k < 64: e(f"s_mov_b64 exec, -1")
            n -= k
            if n > 0: e(f"s_add_u32 {t0}, {t0}, 8192")
    def w1_block_static(self, kb, W1V):
        e = self.e
        t0 = T[0]
        e(f"s_mul_i32 {t0}, {S_P}, 224")
        e(f"s_add_u32 {t0}, {t0}, {kb*32*3584}")
        for i, r in enumerate(W1V):
            e(f"s_mov_b32 m0, {W1_BASE(kb) + i*1024}")
            e(f"buffer_load_dwordx4 v{r}, {SRD_W1}, {t0} offen lds")
    def w1_blocks_dyn(self, kb0, per, W1V):
        e = self.e
        t0, t1 = T[0], T[1]
        e(f"s_mul_i32 {t1}, {S_H}, {per}")
        e(f"s_mul_i32 {t0}, {t1}, {32*3584}")
        e(f"s_mul_i32 {t1}, {t1}, 7168")
        e(f"s_add_u32 {t1}, {t1}, {W1_BASE(kb0)}")
        e(f"s_mul_i32 {T[2]}, {S_P}, 224")
        e(f"s_add_u32 {t0}, {t0}, {T[2]}")
        e(f"s_add_u32 {t0}, {t0}, {kb0*32*3584}")
        for b in range(per):
            for i, r in enumerate(W1V):
                e(f"s_add_u32 m0, {t1}, {b*7168 + i*1024}")
                e(f"buffer_load_dwordx4 v{r}, {SRD_W1}, {t0} offen lds")
            if b + 1 < per: e(f"s_add_u32 {t0}, {t0}, {32*3584}")
    def w2_dma(self, u0, u1, VO):
        e = self.e
        t0, t1, t2 = T[0], T[1], T[2]
        assert all(W2_SLOT(u) == W2_SLOT(u0) + (u - u0) for u in range(u0, u1))
        e(f"s_and_b32 {t0}, {S_P}, 7")
        e(f"s_lshl_b32 {t0}, {t0}, 7")
        e(f"s_lshl_b32 {t2}, {S_H}, 13")
        e(f"s_add_u32 {t0}, {t0}, {t2}")
        e(f"s_add_u32 {t0}, {t0}, {u0*32*1024}")
        e(f"s_lshl_b32 {t1}, {S_H}, 10")
        e(f"s_add_u32 {t1}, {t1}, {W2_SLOT(u0)*4096}")
        self.dma_loop(SRD_W2, VO, t0, 32 * 1024, t1, 4096, u1 - u0)

    def ready_check(self):
        e = self.e
        t0, t1, t2 = T[0], T[1], T[2]
        e(f"""
        s_lshl_b32 {t0}, {S_C}, 4
        s_add_u32 {t1}, {t0}, {S_P}
        v_mov_b32 v12, {t1}
        v_add_u32 v13, {t0}, v0
        v_cmp_gt_u32 vcc, 16, v0
        v_cndmask_b32 v12, v12, v13, vcc
        s_sub_u32 {t2}, {t1}, 16
        s_cmp_ge_u32 {S_C}, 1
        s_cselect_b32 {t2}, {t2}, {t1}
        v_mov_b32 v13, {t2}
        v_cmp_eq_u32 vcc, 16, v0
        v_cndmask_b32 v12, v12, v13, vcc
        s_sub_u32 {t2}, {t1}, 32
        s_cmp_ge_u32 {S_C}, 2
        s_cselect_b32 {t2}, {t2}, {t1}
        v_mov_b32 v13, {t2}
        v_cmp_eq_u32 vcc, 17, v0
        v_cndmask_b32 v12, v12, v13, vcc
        s_mov_b32 s36, s{S_DBG[0]}
        s_and_b32 s37, s{S_DBG[1]}, 0xffff
        s_mov_b32 s38, 256
        s_mov_b32 s39, 0x20000
        s_mov_b32 {T[19]}, 0
        """)
        l0 = e.label("RDY")
        e(f"{l0}:")
        e(f"buffer_load_ubyte v13, v12, {SRD_T}, 0 offen sc1")
        e(f"s_add_u32 {T[19]}, {T[19]}, 1")
        e(f"s_cmp_gt_u32 {T[19]}, {POLL_LIMIT}")
        e(f"s_cbranch_scc1 L_BAIL")
        e(f"s_waitcnt vmcnt(0)")
        e(f"v_cmp_gt_u32 vcc, 0x80, v13")
        e(f"s_cbranch_vccnz {l0}")
        e(f"s_getreg_b32 {t2}, hwreg(HW_REG_XCC_ID)")
        e(f"s_and_b32 {t2}, {t2}, 15")
        e(f"s_or_b32 {t2}, {t2}, 0x80")
        e(f"v_cmp_eq_u32 vcc, {t2}, v13")
        e(f"s_nop 4")
        e(f"s_and_b32 {t0}, vcc_lo, 0xffff")
        e(f"s_cmp_eq_u32 {t0}, 0xffff")
        e(f"s_cselect_b32 {t0}, 1, 0")
        e(f"v_mov_b32 v13, {t0}")
        e(f"v_mov_b32 v14, {L_MODE}")
        e(f"ds_write_b32 v14, v13")
        e(f"s_waitcnt lgkmcnt(0)")

    def halo(self):
        e = self.e
        t0, t1, t2, t3 = T[0], T[1], T[2], T[3]
        ld, lz = e.label("HALOD"), e.label("HALOZ")
        e(f"s_cmp_ge_u32 {S_C}, 2")
        e(f"s_cbranch_scc1 {lz}")
        e(f"v_mov_b32 v12, 0")
        e(f"v_mov_b32 v13, 0")
        e(f"v_mov_b32 v14, 0")
        e(f"v_mov_b32 v15, 0")
        e(f"s_cmp_eq_u32 {S_C}, 0")
        e(f"s_cselect_b32 {t3}, 8, 4")
        e(f"v_add_u32 v16, {L_KBUF}, v1")
        lzz = e.label("ZF")
        e(f"{lzz}:")
        for off in (0, 12288, L_VBUF - L_KBUF, L_VBUF - L_KBUF + 12288):
            e(f"ds_write_b128 v16, v[12:15] offset:{off}")
        e(f"v_add_u32 v16, 1024, v16")
        e(f"s_sub_u32 {t3}, {t3}, 1")
        e(f"s_cmp_lg_u32 {t3}, 0")
        e(f"s_cbranch_scc1 {lzz}")
        e(f"s_waitcnt lgkmcnt(0)")
        e(f"{lz}:")
        e(f"s_cmp_eq_u32 {S_C}, 0")
        e(f"s_cbranch_scc1 {ld}")
        e(f"""
        v_lshrrev_b32 v12, 2, v0
        v_and_b32 v12, 1, v12
        s_cmp_ge_u32 {S_C}, 2
        s_cselect_b32 {t0}, 1, 0
        v_and_b32 v12, {t0}, v12
        s_sub_u32 {t1}, {S_C}, 1
        v_sub_u32 v12, {t1}, v12
        v_lshlrev_b32 v12, 4, v12
        v_add_u32 v12, {S_P}, v12
        v_lshlrev_b32 v12, 2, v12
        v_and_b32 v13, 3, v0
        v_add_u32 v12, v12, v13
        v_lshlrev_b32 v12, 8, v12
        s_mov_b32 {t0}, {WS_KVF}
        """)
        self.poll(t0, 12, 13, "KVF")
        self.stamp(1)
        e(f"s_cmp_ge_u32 {S_C}, 2")
        e(f"s_cselect_b32 {t3}, 0, 4")
        e(f"s_lshl_b32 {t0}, {S_C}, 2")
        e(f"s_add_u32 {t0}, {t0}, {t3}")
        e(f"s_sub_u32 {t0}, {t0}, 8")
        e(f"s_lshl_b32 {t0}, {t0}, 16")
        e(f"s_lshl_b32 {t1}, {S_P}, 12")
        e(f"s_add_u32 {t0}, {t0}, {t1}")
        e(f"s_lshl_b32 {t1}, {S_LAY}, 22")
        e(f"s_add_u32 {t0}, {t0}, {t1}")
        e(f"s_add_u32 {t0}, {t0}, {WS_KV}")
        e(f"s_lshl_b32 {t1}, {t3}, 10")
        lp = e.label("HALO")
        e(f"{lp}:")
        for hd in range(2):
            for kv in range(2):
                e(f"s_add_u32 m0, {t1}, {(L_VBUF if kv else L_KBUF) + hd*12288}")
                e(f"s_add_u32 {t2}, {t0}, {hd*2048 + kv*1024}")
                e(f"buffer_load_dwordx4 v1, {SRD_WS}, {t2} offen sc1 lds")
        e(f"s_add_u32 {t0}, {t0}, 65536")
        e(f"s_add_u32 {t1}, {t1}, 1024")
        e(f"s_add_u32 {t3}, {t3}, 1")
        e(f"s_cmp_lt_u32 {t3}, 8")
        e(f"s_cbranch_scc1 {lp}")
        e(f"s_waitcnt vmcnt(0)")
        self.stamp(2)
        e(f"{ld}:")

    def colsum_w1(self):
        e = self.e
        t0, t1 = T[0], T[1]
        e(f"""
        v_lshrrev_b32 v16, 4, v0
        v_and_b32 v17, 1, v16
        v_lshlrev_b32 v17, 2, v17
        v_lshrrev_b32 v16, 1, v16
        v_lshlrev_b32 v16, 4, v16
        v_add_u32 v16, v16, v17
        v_and_b32 v17, 15, v0
        v_lshrrev_b32 v17, 2, v17
        v_add_u32 v16, v16, v17
        v_mul_u32_u24 v16, 224, v16
        v_and_b32 v17, 3, v0
        v_lshlrev_b32 v17, 3, v17
        v_add_u32 v16, v16, v17
        s_mov_b32 s36, s{S_B1[0]}
        s_and_b32 s37, s{S_B1[1]}, 0xffff
        s_mov_b32 s38, 3584
        s_mov_b32 s39, 0x20000
        s_mov_b32 {T[4]}, {S_H}                 ; nt
        """)
        for r in range(48, 52): e(f"v_mov_b32 v{r}, {S_ONES}")
        lp, le = e.label("CS1"), e.label("CS1E")
        e(f"{lp}:")
        e(f"s_lshl_b32 {t0}, {T[4]}, 5")
        e(f"v_add_u32 v12, {t0}, v16")
        e(f"v_add_u32 v13, 0x10000, v12")
        e(f"v_add_u32 v14, 0x20000, v12")
        e(f"s_mul_i32 {t1}, {S_P}, 224")
        e(f"s_add_u32 {t1}, {t1}, {t0}")
        e(f"v_and_b32 v17, 15, v0")
        e(f"v_lshlrev_b32 v17, 1, v17")
        e(f"buffer_load_ushort v33, v17, {SRD_T}, {t1} offen")
        for r in range(36, 40): e(f"v_mov_b32 v{r}, 0")
        for grp in range(4):
            for k in range(4):
                kb = grp * 4 + k
                b = 52 + 4 * k
                for rdn in range(2):
                    addr = W1_BASE(kb) + rdn * 8 * 224
                    a = (12, 13, 14)[addr >> 16]; off = addr & 0xffff
                    e(f"ds_read_b64_tr_b16 v[{b+2*rdn}:{b+2*rdn+1}], v{a} offset:{off}")
            for k in range(4):
                b = 52 + 4 * k
                e(f"s_waitcnt lgkmcnt({6-2*k})")
                e(f"v_mfma_f32_16x16x32_bf16 v[36:39], v[48:51], v[{b}:{b+3}], v[36:39]")
        e(f"s_nop 7")
        e(f"v_sub_f32 v18, 0, v36")
        e(f"v_cvt_pk_bf16_f32 v19, v18, v18")
        e(f"v_lshlrev_b32 v20, 16, v19")
        e(f"v_sub_f32 v20, v18, v20")
        e(f"v_cvt_pk_bf16_f32 v32, v18, v20")
        e(f"v_lshlrev_b32 v17, 2, v17               ; (l&15)*8")
        e(f"s_lshl_b32 {t0}, {T[4]}, 7")
        e(f"s_add_u32 {t0}, {t0}, {L_XW1}")
        e(f"v_add_u32 v17, {t0}, v17")
        e(f"s_waitcnt vmcnt(0)")
        e(f"ds_write_b64 v17, v[32:33]")
        e(f"s_add_u32 {T[4]}, {T[4]}, 4")
        e(f"s_cmp_lt_u32 {T[4]}, 7")
        e(f"s_cbranch_scc1 {lp}")
        e(f"s_waitcnt lgkmcnt(0)")

    def finish(self):
        e = self.e
        for kind, outl, ACT in self.deferred:
            for lo, lb, st in outl:
                e(f"{lo}:")
                for i in range(4):
                    e(f"v_dot2c_f32_bf16 v{16+(i&1)}, {S_ONES}, v{ACT+4*st+i}")
                    e(f"v_dot2c_f32_bf16 v{18+(i&1)}, v{ACT+4*st+i}, v{ACT+4*st+i}")
                e(f"s_branch {lb}")
        e("L_BAIL:")
        e("s_mov_b64 exec, -1")
        e("L_END:")
        if self.P.get("calibrt", 0):
            e(f"s_cmp_ge_u32 s2, 256")
            e(f"s_cbranch_scc1 L_CAL2")
            e("L_CAL:")
            e(f"s_memrealtime s[66:67]")
            e(f"s_waitcnt lgkmcnt(0)")
            e(f"s_sub_u32 s68, s66, s0")
            e(f"s_cmp_lt_u32 s68, {self.P['calibrt']}")
            e(f"s_cbranch_scc1 L_CAL")
            e("L_CAL2:")
        if self.P.get("calib", 0):
            e(f"s_cmp_ge_u32 s2, 256")
            e(f"s_cbranch_scc1 L_CAL2")
            e(f"s_memtime s[64:65]")
            e(f"s_waitcnt lgkmcnt(0)")
            e("L_CAL:")
            e(f"s_memtime s[66:67]")
            e(f"s_waitcnt lgkmcnt(0)")
            e(f"s_sub_u32 s68, s66, s64")
            e(f"s_cmp_lt_u32 s68, {self.P['calib']}")
            e(f"s_cbranch_scc1 L_CAL")
            e("L_CAL2:")
        if self.stamps:
            e(f"s_cmp_ge_u32 s2, 256")
            e(f"s_cbranch_scc1 L_END2")
            e(f"s_lshl_b32 {T[0]}, s2, 3")
            e(f"s_add_u32 {T[0]}, {T[0]}, {S_W}")
            e(f"s_lshl_b32 {T[0]}, {T[0]}, 8")
            e(f"s_add_u32 {T[0]}, {T[0]}, {WS_STAMP}")
            e(f"v_lshlrev_b32 v12, 2, v0")
            e(f"s_memrealtime s[98:99]")
            e(f"s_waitcnt lgkmcnt(0)")
            e(f"v_writelane_b32 v11, s98, 63")
            e(f"buffer_store_dword v11, v12, {SRD_WS}, {T[0]} offen")
            if self.P.get("dbgdump", 0):
                e(f"s_cmp_lg_u32 s2, {self.P.get('dbgwg', 0)}")
                e(f"s_cbranch_scc1 L_END2")
                e(f"s_cmp_lg_u32 {S_W}, 0")
                e(f"s_cbranch_scc1 L_END2")
                sel = [0, 15, 16, 2, 4, 5, 8, 11, 14, 32+4, 32+14, 20, 23, 31, 63, 63]
                for i, l in enumerate(sel):
                    e(f"v_readlane_b32 s{64+i}, v11, {l}")
                e(f"s_nop 4")
                for i in range(16):
                    e(f"v_writelane_b32 v13, s{64+i}, {i}")
                e(f"s_mov_b32 s36, s{S_DBG[0]}")
                e(f"s_and_b32 s37, s{S_DBG[1]}, 0xffff")
                e(f"s_mov_b32 s38, 256")
                e(f"s_mov_b32 s39, 0x20000")
                e(f"s_mov_b64 exec, 0xffff")
                e(f"buffer_store_dword v13, v12, {SRD_T}, 0 offen sc1")
            e("L_END2:")
        e("s_endpgm")
        e("L_CODE_END:")

    def build(self):
        e = self.e
        hdr = f"""; Persistent fused 2-layer transformer block (sliding-window attention + squared-relu MLP), gfx950
; @launch grid=(256,1,1) block=(512,1,1) lds={LDS_TOTAL}
.amdgcn_target "amdgcn-amd-amdhsa--gfx950"
.text
.globl {KNAME}
.p2align 8
.type {KNAME},@function
{KNAME}:
"""
        self.prologue()
        self.compute()
        self.helper()
        self.finish()
        tail = f"""
.section .rodata,"a"
.p2align 6
.amdhsa_kernel {KNAME}
  .amdhsa_next_free_vgpr 256
  .amdhsa_next_free_sgpr 102
  .amdhsa_accum_offset 256
  .amdhsa_group_segment_fixed_size 0
  .amdhsa_kernarg_size 88
  .amdhsa_user_sgpr_count 2
  .amdhsa_user_sgpr_kernarg_segment_ptr 1
  .amdhsa_system_sgpr_workgroup_id_x 1
.end_amdhsa_kernel
"""
        return hdr + e.text() + tail

if __name__ == "__main__":
    import argparse
    ap = argparse.ArgumentParser()
    ap.add_argument("-o", default="k.s")
    ap.add_argument("--stop", default=None)
    ap.add_argument("--stamps", action="store_true")
    ap.add_argument("--slow", action="store_true")
    ap.add_argument("-P", action="append", default=[])
    a = ap.parse_args()
    stop = None
    if a.stop:
        n, l = a.stop.split(":"); stop = (n, int(l))
    params = {kv.split("=")[0]: int(kv.split("=")[1]) for kv in a.P}
    g = Gen(stop=stop, stamps=a.stamps, force_slow=a.slow, params=params)
    txt = g.build()
    open(a.o, "w").write(txt)
    print("instructions:", g.e.nins, "nop states added:", g.e.nops_added, "bytes of text:", len(txt))
```
